```python
import torch

def _softmax(x, axis=-1):
    return torch.softmax(x, dim=axis)
def _gelu(x):
    return torch.nn.functional.gelu(x, approximate="tanh")
def _silu(x):
    return torch.nn.functional.silu(x)
def _sigmoid(x):
    return torch.sigmoid(x)
def _layernorm(x, axis=-1, eps=1e-5):
    m = x.mean(dim=axis, keepdim=True)
    v = x.var(dim=axis, keepdim=True, unbiased=False)
    return (x - m) / torch.sqrt(v + eps)
def _scatter_add(tgt, idx, src, axis=0):
    return tgt.clone().index_add_(axis, idx, src)
def _segment_sum(src, seg, n):
    out = torch.zeros((n,) + src.shape[1:], dtype=src.dtype)
    return out.index_add_(0, seg, src)
def _pad(x, pw):
    flat = tuple(v for pair in reversed(pw) for v in pair)
    return torch.nn.functional.pad(x, flat)

kernel_name = 'recurrent_scan__sliding_local_dilated__swiglu_ffn__prompt'

def setup_inputs():

    _w = (lambda a: (lambda t: t.to(torch.bfloat16) if t.is_floating_point() else t)(torch.as_tensor(a)))
    def _A_setup():
        B, S, D = 1, 2048, 640
        return {
            "x": _w((lambda *s: torch.randn(*s, dtype=torch.bfloat16) * 0.05)(B, S, D)),
            "wqkv": _w((lambda *s: torch.randn(*s, dtype=torch.bfloat16) * 0.05)(D, 3 * D)),
            "wo": _w((lambda *s: torch.randn(*s, dtype=torch.bfloat16) * 0.05)(D, D)),
        }
    _A_in = _A_setup()

    def _B_setup():
        B, S, D, F = 1, 2048, 640, 1536
        return {
            "x": _w((lambda *s: torch.randn(*s, dtype=torch.bfloat16) * 0.05)(B, S, D)),
            "w_gate": _w((lambda *s: torch.randn(*s, dtype=torch.bfloat16) * 0.05)(D, F)),
            "w_up": _w((lambda *s: torch.randn(*s, dtype=torch.bfloat16) * 0.05)(D, F)),
            "w_down": _w((lambda *s: torch.randn(*s, dtype=torch.bfloat16) * 0.05)(F, D)),
        }
    _B_in = _B_setup()

    return {
        "A_x": _A_in["x"],
        "A_wqkv": _A_in["wqkv"],
        "A_wo": _A_in["wo"],
        "B_x": _B_in["x"],
        "B_w_gate": _B_in["w_gate"],
        "B_w_up": _B_in["w_up"],
        "B_w_down": _B_in["w_down"],
    }

def reference(A_x, A_wqkv, A_wo, B_x, B_w_gate, B_w_up, B_w_down):
    def _A_ref(x, wqkv, wo):
        B, S, D = x.shape
        H = 32; Dh = D // H
        W, dil = 8, 2
        qkv = (lambda x, *d: x.permute(*d))((x @ wqkv).reshape(B, S, 3, H, Dh), 2, 0, 3, 1, 4)
        q, k, v = qkv[0], qkv[1], qkv[2]
        scale = Dh ** -0.5
        pos = torch.arange(S)
        off = torch.arange(W) * dil
        idx = pos[:, None] - off[None, :]
        mask = idx >= 0
        idx_c = torch.where(mask, idx, 0).reshape(-1)
        kg = k[:, :, idx_c, :].reshape(B, H, S, W, Dh)
        vg = v[:, :, idx_c, :].reshape(B, H, S, W, Dh)
        logits = torch.einsum("bhsd,bhswd->bhsw", q, kg) * scale
        logits = torch.where(mask[None, None, :, :], logits, -1e9)
        attn = _softmax(logits, axis=-1)
        o = torch.einsum("bhsw,bhswd->bhsd", attn, vg)
        return (lambda x, *d: x.permute(*d))(o, 0, 2, 1, 3).reshape(B, S, D) @ wo

    def _B_ref(x, w_gate, w_up, w_down):
        g = _silu(x @ w_gate)
        u = x @ w_up
        return (g * u) @ w_down

    x = A_x
    xn = _layernorm(x, axis=-1)
    s = _A_ref(xn, A_wqkv, A_wo)
    g = _silu(_B_ref(xn, B_w_gate, B_w_up, B_w_down))
    return x + s * g
```

```python
import re

REG = re.compile(r'(?<![\w.])([vas])(?:\[(\d+):(\d+)\]|(\d+))(?![\w])')
TRANS = ('v_exp_f32', 'v_log_f32', 'v_rcp_f32', 'v_rsq_f32', 'v_sqrt_f32', 'v_sin_f32', 'v_cos_f32')

def regs_of(op):
    out = []
    op = op.strip()
    for m in REG.finditer(op):
        k = m.group(1)
        if m.group(4) is not None: out.append((k, int(m.group(4))))
        else: out += [(k, i) for i in range(int(m.group(2)), int(m.group(3)) + 1)]
    for nm in ('vcc', 'exec', 'm0'):
        if re.search(r'(?<![\w])' + nm + r'(_lo|_hi)?(?![\w])', op): out.append(('x', nm))
    return out

class I:
    __slots__ = ('text', 'kind', 'defs', 'uses', 'tag', 'srcc', 'srcab', 'wide_data', 'op', 'vm', 'lg', 'waittags', 'note')
    def __init__(self, text, tag=None):
        self.text = text; self.tag = tag; self.srcc = (); self.srcab = (); self.wide_data = ()
        self.vm = None; self.lg = None; self.waittags = None; self.note = None
        t = text.split(';')[0].strip()
        if t.endswith(':') or t.startswith('.') or not t:
            self.kind = 'label' if t.endswith(':') else 'dir'; self.defs = (); self.uses = (); self.op = t; return
        sp = t.split(None, 1)
        op = self.op = sp[0]
        ops = [o.strip() for o in sp[1].split(',')] if len(sp) > 1 else []
        R = [regs_of(o) for o in ops]
        flat = lambda L: [r for x in L for r in x]
        d = []; u = []
        if op.startswith('v_mfma'):
            k = 'mfma'; d = R[0]; u = flat(R[1:]); self.srcc = tuple(R[3]); self.srcab = tuple(R[1] + R[2])
        elif op.startswith('ds_read'): k = 'dsr'; d = R[0]; u = flat(R[1:])
        elif op.startswith('ds_write') or op.startswith('ds_add'): k = 'dsw'; u = flat(R)
        elif op.startswith('buffer_load') or op.startswith('global_load'):
            if re.search(r'\blds\b', t): k = 'dma'; u = flat(R) + [('x', 'm0')]
            else: k = 'vld'; d = R[0]; u = flat(R[1:])
        elif op.startswith('buffer_store') or op.startswith('global_store') or op.startswith('buffer_atomic') or op.startswith('global_atomic'):
            k = 'vst'; u = flat(R)
            if 'x4' in op or 'x3' in op: self.wide_data = tuple(R[0] if op.startswith('buffer') else R[1])
        elif op.startswith('buffer_'): k = 'vst'
        elif op == 's_waitcnt': k = 'wait'
        elif op == 's_nop': k = 'nop'
        elif op == 's_barrier': k = 'barrier'
        elif op.startswith('s_cbranch') or op in ('s_branch', 's_endpgm', 's_setpc_b64'):
            k = 'branch'
            if 'vcc' in op: u = [('x', 'vcc')]
            if 'exec' in op: u = [('x', 'exec')]
        elif op.startswith('s_load') or op.startswith('s_memtime') or op.startswith('s_memrealtime'):
            k = 'smem'; d = R[0]; u = flat(R[1:])
        elif op.startswith('s_cmp') or op in ('s_setprio', 's_sleep', 's_bitcmp0_b32', 's_bitcmp1_b32'): k = 'salu'; u = flat(R)
        elif op.startswith('s_'):
            k = 'salu'; d = R[0]; u = flat(R[1:])
            if 'saveexec' in op: d = d + [('x', 'exec')]; u = u + [('x', 'exec')]
            if op.startswith('s_addk') or op.startswith('s_mulk'): u = u + d
        elif op.startswith('v_'):
            base = re.sub(r'_e(32|64)$', '', op)
            k = 'trans' if base in TRANS else 'valu'
            if op.startswith('v_permlane') or op.startswith('v_swap'): d = R[0] + R[1]; u = R[0] + R[1]
            else:
                d = R[0]; u = flat(R[1:])
                if base.startswith('v_fmac') or base.startswith('v_mac') or base.startswith('v_writelane'): u = u + d
                if '_co_' in base: d = R[0] + R[1]; u = flat(R[2:])
                if base.startswith('v_cmpx'): d = d + [('x', 'exec')]
        else: raise ValueError('unknown op: ' + text)
        self.kind = k; self.defs = tuple(d); self.uses = tuple(u)
    def __repr__(self): return self.text

def W(tags, lg0=False):
    i = I('s_waitcnt ?'); i.kind = 'wait'; i.waittags = tuple(tags) if not isinstance(tags, str) else (tags,)
    return i

VMK = ('vld', 'vst', 'dma'); LGK = ('dsr', 'dsw')
SCAL = ('salu', 'wait', 'barrier', 'nop', 'smem')

def parse_wait(i):
    m = re.search(r'vmcnt\((\d+)\)', i.text); i.vm = int(m.group(1)) if m else None
    m = re.search(r'lgkmcnt\((\d+)\)', i.text); i.lg = int(m.group(1)) if m else None
def fmt_wait(i):
    p = []
    if i.vm is not None: p.append('vmcnt(%d)' % i.vm)
    if i.lg is not None: p.append('lgkmcnt(%d)' % i.lg)
    i.text = 's_waitcnt ' + ' '.join(p)

def autowait(seq, hoist=True, state=None):
    out = []
    vmq = list(state['vm']) if state else []
    lgq = list(state['lg']) if state else []
    def put(vm_op, lg_op):
        pos = len(out)
        if hoist:
            p = pos
            while p > 0:
                x = out[p-1]
                if x.kind == 'mfma': pos = p; break
                if x is vm_op or x is lg_op or x.kind in ('label', 'branch', 'barrier', 'dir'): break
                p -= 1
        after = out[pos:]
        w = None
        if pos < len(out) and out[pos].kind == 'wait': w = out[pos]; after = out[pos+1:]
        elif pos > 0 and out[pos-1].kind == 'wait': w = out[pos-1]
        if w is None:
            w = I('s_waitcnt x'); out.insert(pos, w)
        if vm_op is not None:
            idx = vmq.index(vm_op)
            n = len(vmq) - 1 - idx - sum(1 for x in after if x.kind in VMK)
            assert n >= 0
            n = min(n, 63)
            w.vm = n if w.vm is None else min(w.vm, n)
            del vmq[:idx+1]
        if lg_op is not None:
            idx = lgq.index(lg_op)
            na = sum(1 for x in after if x.kind in LGK or x.kind == 'smem')
            if any(x.kind == 'smem' for x in lgq[:len(lgq)-na]):
                n = 0; del lgq[:len(lgq)-na]
            else:
                n = len(lgq) - 1 - idx - na
                assert n >= 0
                if n > 15:
                    n = 15; idx = len(lgq) - na - 1 - 15
                del lgq[:idx+1]
            w.lg = n if w.lg is None else min(w.lg, n)
        fmt_wait(w)
    for i in seq:
        if i.kind == 'wait':
            if i.waittags is not None:
                vm_op = lg_op = None
                for x in vmq:
                    if x.tag in i.waittags: vm_op = x
                for x in lgq:
                    if x.tag in i.waittags: lg_op = x
                if vm_op is not None or lg_op is not None: put(vm_op, lg_op)
                continue
            parse_wait(i)
            if i.vm is not None: del vmq[:max(0, len(vmq) - i.vm)]
            if i.lg is not None:
                if i.lg == 0 or not any(x.kind == 'smem' for x in lgq): del lgq[:max(0, len(lgq) - i.lg)]
            out.append(i); continue
        touch = set(i.uses) | set(i.defs)
        vm_op = lg_op = None
        if touch:
            for x in vmq:
                if x.defs and touch.intersection(x.defs): vm_op = x
            for x in lgq:
                if x.defs and touch.intersection(x.defs):
                    if i.kind == 'dsr' and x.kind == 'dsr' and not set(i.uses).intersection(x.defs): continue
                    lg_op = x
        if vm_op is not None or lg_op is not None: put(vm_op, lg_op)
        out.append(i)
        if i.kind in VMK:
            vmq.append(i)
            assert len(vmq) <= 63, 'too many vm ops outstanding at ' + i.text
        if i.kind in LGK or i.kind == 'smem': lgq.append(i)
    if state is not None: state['vm'] = vmq; state['lg'] = lgq
    return out

def states(i):
    if i.kind in ('label', 'dir'): return 0
    if i.kind == 'nop': return int(i.text.split()[1]) + 1
    return 1

def need_dist(p, c):
    n = 0
    pd = set(p.defs); cu = set(c.uses); cd = set(c.defs)
    if p.kind in ('valu', 'trans'):
        vd = {r for r in pd if r[0] in 'va'}; sd = {r for r in pd if r[0] == 's' or r == ('x', 'vcc')}
        if c.kind == 'mfma' and vd & cu: n = max(n, 2)
        if c.kind == 'mfma' and ('x', 'exec') in pd: n = max(n, 4)
        if p.kind == 'trans' and c.kind in ('valu', 'trans') and vd & cu: n = max(n, 1)
        if c.kind in ('valu', 'trans') and sd & cu: n = max(n, 4 if c.op.startswith(('v_readlane', 'v_writelane')) else 2)
        if c.kind in VMK and sd & cu: n = max(n, 5)
        if c.op.startswith(('v_readfirstlane', 'v_readlane')) and vd & cu: n = max(n, 1)
        if (c.op.startswith('v_permlane') or 'row_' in c.text or 'quad_perm' in c.text or 'wave_' in c.text) and vd & cu: n = max(n, 2)
        if ('sdwa' in p.op or 'op_sel' in p.text) and c.kind in ('valu', 'trans') and vd & (cu | cd): n = max(n, 1)
        if c.kind == 'branch' and pd & cu: n = max(n, 5)
    elif p.kind == 'mfma':
        if c.kind == 'mfma':
            if pd & set(c.srcab): n = max(n, 8)
            if pd & set(c.srcc) and tuple(p.defs) != tuple(c.srcc): n = max(n, 6)
            if pd & cd and tuple(p.defs) != tuple(c.srcc): n = max(n, 6)
        elif c.kind in ('valu', 'trans') + VMK + LGK:
            if pd & (cu | cd): n = max(n, 8)
            if c.kind in ('valu', 'trans') and set(p.srcc) & cd: n = max(n, 3)
    elif p.kind == 'salu':
        if ('x', 'm0') in pd and c.kind == 'dma': n = max(n, 1)
    elif p.kind == 'vst':
        if p.wide_data and set(p.wide_data) & cd: n = max(n, 2)
    return n

def hazards(seq, verbose=False):
    out = []; added = 0
    for c in seq:
        if c.kind in ('label', 'dir', 'nop', 'wait'): out.append(c); continue
        dist = 0; pad = 0
        for p in reversed(out):
            if dist >= 8: break
            nd = need_dist(p, c)
            if nd > dist and nd - dist > pad:
                pad = nd - dist
                if verbose: print('hazard pad', pad, ':', p.text, '->', c.text)
            dist += states(p)
        if pad:
            out.append(I('s_nop %d' % (pad - 1))); added += pad
        out.append(c)
    return out, added

def estimate(seq):
    t = 0; mf = -99; lastv = -99; n = 0
    for i in seq:
        k = i.kind
        if k in ('label', 'dir'): continue
        if k == 'mfma':
            t = max(t, mf + 16); mf = t; t += 4; n += 1; lastv = -99
        elif k in SCAL or k == 'branch':
            t += 4 * states(i)
        else:
            t = max(t, mf + 8)
            if k in LGK or k in VMK:
                t = max(t, lastv + 12)
                t += 4
            elif k == 'trans': lastv = t + 4; t += 8
            else: lastv = t; t += 4
    return t, n

class Delay:
    def __init__(self, n): self.n = n
class NotBefore:
    def __init__(self, g): self.g = g

class Sched:
    def __init__(self):
        self.m = []; self.sc = []; self.vec = []; self.res = []
    def mfma(self, text):
        self.m.append(I(text)); self.sc.append([]); self.vec.append([]); self.res.append(0)
        return len(self.m) - 1
    def n(self): return len(self.m)
    def cap(self, g):
        ns = max(len([x for x in self.sc[g]]) + self.res[g], 1)
        used = sum(2 if x.kind == 'trans' else 1 for x in self.vec[g])
        return 3 - ns - used
    def nscal(self, g): return len(self.sc[g]) + self.res[g]
    def pin(self, g, *ins):
        for i in ins:
            if isinstance(i, str): i = I(i)
            if i.kind in SCAL: self.sc[g].append(i)
            else: self.vec[g].append(i)
    def reserve(self, g): self.res[g] = 1
    def flow(self, items, g0, g1=None, overflow=0):
        g1 = self.n() if g1 is None else g1
        g = g0; k = 0; placed_vec_here = False; last = g0
        items = [I(x) if isinstance(x, str) else x for x in items]
        while k < len(items) and g < g1:
            it = items[k]
            if isinstance(it, Delay):
                g = max(g, last + it.n); placed_vec_here = False; k += 1; continue
            if isinstance(it, NotBefore):
                if it.g > g: g = it.g; placed_vec_here = False
                k += 1; continue
            ok = False
            if it.kind in SCAL:
                if not placed_vec_here and (self.nscal(g) == 0 or (self.cap(g) + overflow >= 1 and self.nscal(g) < 2)):
                    self.sc[g].append(it); ok = True
            else:
                c = 2 if it.kind == 'trans' else 1
                ismem = it.kind in LGK or it.kind in VMK
                if self.cap(g) + overflow >= c:
                    if ismem:
                        if not placed_vec_here or all(x.kind in LGK or x.kind in VMK for x in self.vec[g]):
                            p = len([x for x in self.vec[g] if x.kind in LGK or x.kind in VMK])
                            self.vec[g].insert(p, it); ok = True
                    else:
                        self.vec[g].append(it); ok = True
                if ok: placed_vec_here = True
            if ok: last = g; k += 1
            else: g += 1; placed_vec_here = False
        return last, [x for x in items[k:]]
    def linear(self):
        out = []
        for g in range(self.n()):
            out.append(self.m[g]); out += self.sc[g]; out += self.vec[g]
        return out

def L(text):
    return [I(x.strip()) for x in text.strip().split('\n') if x.split(';')[0].strip()]
def plain(items): return [I(x) if isinstance(x, str) else x for x in items if not isinstance(x, (Delay, NotBefore))]
def render(seq):
    return ''.join((i.text if i.kind in ('label', 'dir') else '    ' + i.text) + '\n' for i in seq)
```

```python
NAME = "recurrent_scan__sliding_local_dilated__swiglu_ffn__prompt"
WS_QKV = 0
WS_HO = 0x800000
WS_W2 = 0x1100000
WS_FLAG = 0x1400000
WS_SIZE = 0x10000000
STAMP_OFF = 0x8000000
LOG2E = 1.4426950408889634
import struct
def f2u(x): return struct.unpack('<I', struct.pack('<f', x))[0]
def fh(x): return '0x%08x' % f2u(x)
```

```python
from asm import *
from cfg import *

AR = 8
ONES = 24; CSA = 28; CSV = 36; NEGM = 44; RS = 48; VEPS = 52; TMP = 56
ACCA = 64; ACCB = 128; XV = 192
vTR = (1, 2); vTH = (3, 4); vDW = 5; vST = 6; vCS = 7
vXR = (36, 37, 38, 39); vXD = (40, 41); vDW2 = 60; vDWH = 61; vL16 = 62; vCSH = 63
STA = ACCB + 48
MB = 9 * 16384
sTAB = 24; sTABH = 34; sT = 39; sLW = 41; sBQ = 42; sBF = 43; sBH = 44; sBX = 45
sW = 46; sTt = 47; sN = 48; sR = 49; sC = 50; sE = 51; sQ0 = 52; sH0 = 56; sK = 58; sQS = 59
SRDX = 's[4:7]'; SRDQ = 's[8:11]'; SRDF = 's[12:15]'; SRDW = 's[16:19]'; SRDQS = 's[20:23]'

def xreg(ks, q):
    if ks < 16: b = (ks * 4 + q) * 4; return 'a[%d:%d]' % (b, b + 3)
    b = XV + ((ks - 16) * 4 + q) * 4; return 'v[%d:%d]' % (b, b + 3)
def v4(b): return 'v[%d:%d]' % (b, b + 3)
def MF(d, a, b, c): return 'v_mfma_f32_16x16x32_bf16 %s, %s, %s, %s' % (d, a, b, c)

def dma_item(kind, s, slot, tag):
    o = ['s_add_u32 m0, s%d, %d' % (sLW, slot * 16384)]
    if kind == 'x':
        o.append('s_add_u32 s%d, s%d, s%d' % (sT, sTAB + s, sBX)); srd = SRDX; steps = [8*1280 - 1024] * 3; vo = [vXD[0], vXD[1]] * 2
    elif kind == 'q':
        o += ['s_mul_i32 s%d, s%d, 1920' % (sT, sTAB + s), 's_add_u32 s%d, s%d, s%d' % (sT, sT, sBQ)]
        srd = SRDQ; steps = [4*3840 - 1024, 12*3840 - 1024, 4*3840 - 1024]; vo = [vDW] * 4
    elif kind == 'f':
        o += ['s_mul_i32 s%d, s%d, 1536' % (sT, sTAB + s), 's_add_u32 s%d, s%d, s%d' % (sT, sT, sBF)]
        srd = SRDF; steps = [4*3072 - 1024, 12*3072 - 1024, 4*3072 - 1024]; vo = [vDW2] * 4
    elif kind == 'h':
        o.append('s_add_u32 s%d, s%d, s%d' % (sT, sTABH + s, sBH)); srd = SRDF; steps = [16*3072 - 1024] * 3; vo = [vDWH] * 4
    o = [I(x) for x in o]
    for i in range(4):
        o.append(I('buffer_load_dwordx4 v%d, %s, s%d offen offset:%d lds' % (vo[i], srd, sT, 1024 * i), tag=tag))
        if i < 3: o.append(I('s_add_u32 s%d, s%d, %d' % (sT, sT, steps[i])))
    return o

def prologue(opt):
    p = L(f"""
    s_cmp_ge_u32 s2, 256
    s_cbranch_scc1 K1_end
    s_load_dwordx2 s[4:5], s[0:1], 0
    s_load_dwordx2 s[8:9], s[0:1], 8
    s_load_dwordx4 s[60:63], s[0:1], 32
    s_load_dwordx2 s[16:17], s[0:1], 72
    s_load_dwordx2 s[64:65], s[0:1], 16
    s_load_dwordx2 s[66:67], s[0:1], 48
    s_getpc_b64 s[68:69]
    v_lshlrev_b32 v1, 7, v0
    v_lshrrev_b32 v2, 6, v0
    global_load_dword v{TMP}, v1, s[68:69]
    v_readfirstlane_b32 s{sW}, v2
    v_and_b32 v0, 63, v0
    s_and_b32 s70, s2, 7
    s_lshr_b32 s71, s2, 3
    s_and_b32 s72, s70, 1
    s_lshl_b32 s72, s72, 3
    s_and_b32 s73, s71, 7
    s_add_u32 s{sR}, s72, s73
    s_lshr_b32 s70, s70, 1
    s_lshl_b32 s70, s70, 2
    s_lshr_b32 s71, s71, 3
    s_add_u32 s{sC}, s70, s71
    s_mul_i32 s71, s71, 5
    s_add_u32 s71, s71, 1
    s_lshr_b32 s71, s71, 1
    s_add_u32 s71, s71, s73
    s_lshl_b32 s71, s71, 7
    """)
    if not opt.get('rot', True): p += L("s_mov_b32 s71, 0")
    for s in range(10):
        if s: p += L(f"s_add_u32 s71, s{sTAB+s-1}, 128")
        p += L(f"""
        s_sub_u32 s70, s71, 1280
        s_cselect_b32 s{sTAB+s}, s71, s70
        """)
    p += L(f"""
    v_lshrrev_b32 v1, 3, v0
    v_and_b32 v2, 7, v0
    v_lshrrev_b32 v3, 1, v1
    v_xor_b32 v4, v2, v3
    v_lshlrev_b32 v4, 4, v4
    v_mul_u32_u24 v5, 1280, v1
    v_add_u32 v{vXD[0]}, v5, v4
    v_xor_b32 v{vXD[1]}, 64, v{vXD[0]}
    v_lshlrev_b32 v3, 1, v3
    v_xor_b32 v4, v2, v3
    v_lshlrev_b32 v4, 4, v4
    v_and_b32 v6, 4, v1
    v_add_u32 v6, v6, v1
    v_mul_u32_u24 v5, 3840, v6
    v_add_u32 v{vDW}, v5, v4
    v_mul_u32_u24 v7, 3072, v6
    v_add_u32 v{vDW2}, v7, v4
    s_lshr_b32 s{sTt}, s{sW}, 1
    s_and_b32 s{sN}, s{sW}, 1
    s_lshl_b32 s{sLW}, s{sW}, 12
    s_lshl_b32 s70, s{sR}, 2
    s_add_u32 s70, s70, s{sW}
    s_mul_i32 s{sBX}, s70, {32*1280}
    s_lshl_b32 s70, s{sC}, 1
    s_add_u32 s70, s70, s{sTt}
    s_lshl_b32 s70, s70, 7
    s_mul_i32 s71, s{sN}, {32*3840}
    s_add_u32 s{sBQ}, s70, s71
    s_mov_b32 s6, 2621440
    s_mov_b32 s7, 0x20000
    s_mov_b32 s10, 2457600
    s_mov_b32 s11, 0x20000
    s_waitcnt lgkmcnt(0)
    """)
    return p

def setup2(opt):
    p = L(f"""
    s_cmp_eq_u32 s{sTt}, 0
    s_cselect_b32 s12, s60, s62
    s_cselect_b32 s13, s61, s63
    s_mov_b32 s14, 1966080
    s_mov_b32 s15, 0x20000
    s_mov_b32 s18, {WS_SIZE}
    s_mov_b32 s19, 0x20000
    s_mov_b32 s20, s16
    s_mov_b32 s21, s17
    s_cmp_eq_u32 s{sC}, 15
    s_cselect_b32 s22, 0, s18
    s_mov_b32 s23, 0x20000
    s_lshl_b32 s70, s{sC}, 7
    s_mul_i32 s71, s{sN}, {32*3072}
    s_add_u32 s{sBF}, s70, s71
    s_lshl_b32 s70, s{sC}, 6
    s_add_u32 s{sBH}, s70, 2048
    s_cmp_eq_u32 s{sN}, 0
    """)
    for s in range(5): p += L(f"s_cselect_b32 s{sTABH+s}, s{sTAB+2*s}, s{sTAB+2*s+1}")
    for s in range(5): p += L(f"s_mul_i32 s{sTABH+s}, s{sTABH+s}, 1536")
    p += L(f"""
    s_cmp_lt_u32 s{sC}, 5
    s_cselect_b32 s{sQS}, {fh(20**-0.5*LOG2E)}, 1.0
    s_mov_b32 s{sK}, {fh(-(20**0.5))}
    s_cselect_b32 s{sK}, s{sK}, {fh(-LOG2E)}
    s_cmp_eq_u32 s{sTt}, 1
    s_cselect_b64 vcc, -1, 0
    """)
    p += L(f"""
    s_lshl_b32 s70, s{sR}, 2
    s_add_u32 s70, s70, s{sW}
    s_mul_i32 s71, s70, 122880
    s_xor_b32 s70, s70, 1
    s_mul_i32 s72, s70, 122880
    s_lshl_b32 s70, s{sC}, 2
    s_add_u32 s70, s70, s{sN}
    s_lshl_b32 s70, s70, 1
    s_add_u32 s70, s70, s{sTt}
    s_lshl_b32 s70, s70, 10
    s_add_u32 s{sQ0}, s71, s70
    s_add_u32 s{sQ0+2}, s72, s70
    s_xor_b32 s70, s70, 1024
    s_add_u32 s{sQ0+1}, s71, s70
    s_add_u32 s{sQ0+3}, s72, s70
    s_lshl_b32 s70, s{sR}, 1
    s_add_u32 s70, s70, s{sTt}
    s_mul_i32 s70, s70, {68*4096}
    s_add_u32 s70, s70, {WS_HO}
    s_lshl_b32 s71, s{sN}, 11
    s_add_u32 s70, s70, s71
    s_lshl_b32 s71, s{sC}, 1
    s_add_u32 s71, s71, s{sN}
    s_lshl_b32 s71, s71, 12
    s_lshl_b32 s72, s{sTt}, 9
    s_add_u32 s71, s71, s72
    s_add_u32 s{sH0}, s70, s71
    s_add_u32 s71, s{sC}, 32
    s_lshl_b32 s71, s71, 12
    s_lshl_b32 s72, s{sN}, 9
    s_add_u32 s71, s71, s72
    s_add_u32 s{sH0+1}, s70, s71
    """)
    p += L(f"""
    v_lshrrev_b32 v8, 5, v0
    v_bfe_u32 v9, v0, 2, 3
    v_and_b32 v10, 3, v0
    v_lshrrev_b32 v11, 1, v9
    s_lshl_b32 s70, s{sN}, 1
    s_add_u32 s70, s70, s{sTt}
    v_xor_b32 v11, s70, v11
    v_lshlrev_b32 v11, 5, v11
    v_lshl_add_u32 v11, v10, 3, v11
    v_lshl_add_u32 v11, v9, 7, v11
    v_lshl_add_u32 v{vTR[0]}, v8, 11, v11
    v_xor_b32 v{vTR[1]}, 32, v{vTR[0]}
    v_lshrrev_b32 v11, 2, v9
    v_xor_b32 v11, s{sN}, v11
    v_lshlrev_b32 v11, 5, v11
    v_lshl_add_u32 v11, v10, 3, v11
    v_lshl_add_u32 v11, v9, 6, v11
    v_lshl_add_u32 v11, v8, 10, v11
    s_lshl_b32 s71, s{sTt}, 13
    v_add_u32 v{vTH[0]}, s71, v11
    v_xor_b32 v{vTH[1]}, 0x2000, v{vTH[0]}
    v_bfe_u32 v11, v0, 4, 1
    v_lshlrev_b32 v12, 1, v11
    v_xor_b32 v12, v12, v10
    v_lshlrev_b32 v12, 4, v12
    v_and_b32 v13, 3, v9
    v_lshl_add_u32 v13, v8, 2, v13
    v_lshl_add_u32 v13, v11, 3, v13
    v_mul_u32_u24 v13, 3072, v13
    v_add_u32 v{vDWH}, v13, v12
    v_and_b32 v9, 15, v0
    v_lshrrev_b32 v10, 4, v0
    v_lshrrev_b32 v11, 1, v9
    v_xor_b32 v11, v11, v10
    v_lshlrev_b32 v11, 4, v11
    v_lshl_add_u32 v11, v9, 7, v11
    v_add_u32 v{vXR[0]}, s{sLW}, v11
    v_xor_b32 v{vXR[1]}, 0x1000, v{vXR[0]}
    v_xor_b32 v{vXR[2]}, 64, v{vXR[0]}
    v_xor_b32 v{vXR[3]}, 64, v{vXR[1]}
    v_lshlrev_b32 v{vL16}, 4, v0
    v_and_b32 v11, 31, v0
    v_lshlrev_b32 v11, 4, v11
    v_lshl_add_u32 v{vST}, v8, 10, v11
    s_lshl_b32 s70, s70, 6
    s_add_u32 s70, s70, {MB + 10240}
    v_lshlrev_b32 v10, 4, v10
    v_add_u32 v{vCS}, s70, v10
    v_xor_b32 v{vCSH}, 64, v{vCS}
    v_mov_b32 v{ONES}, 0x3f803f80
    v_mov_b32 v{ONES+1}, 0x3f803f80
    v_mov_b32 v{ONES+2}, 0x3f803f80
    v_mov_b32 v{ONES+3}, 0x3f803f80
    """)
    return p

def stats_write():
    t = TMP
    a = [f's_lshl_b32 s{sE}, s{sW}, 11', f's_add_u32 s{sE}, s{sE}, {MB}', f'v_add_u32 v{t}, s{sE}, v{vL16}',
         f's_lshl_b32 s{sE}, s{sW}, 9', f's_add_u32 s{sE}, s{sE}, {MB+8192}', f'v_lshl_add_u32 v{t+1}, v0, 2, s{sE}']
    w = [I(f'ds_write_b128 v{t}, {v4(STA+8)}', tag='st'), I(f'ds_write_b128 v{t}, {v4(STA+12)} offset:1024', tag='st'),
         I(f'ds_write_b32 v{t+1}, v{STA}', tag='st'), I(f'ds_write_b32 v{t+1}, v{STA+4} offset:256', tag='st')]
    return a, w
def stats_read():
    t = TMP
    o = [f'v_and_b32 v{t+2}, 15, v0', f'v_lshrrev_b32 v{t+3}, 2, v{t+2}', f'v_lshl_add_u32 v{t+3}, v{t+3}, 4, v{t+2}',
         f'v_and_b32 v{t+2}, 3, v0', f'v_lshlrev_b32 v{t+2}, 2, v{t+2}', f'v_lshl_add_u32 v{t+2}, v{t+3}, 4, v{t+2}',
         f's_lshl_b32 s{sE}, s{sW}, 11', f's_add_u32 s{sE}, s{sE}, {MB}',
         f'v_add_u32 v{t+2}, s{sE}, v{t+2}', f'v_xor_b32 v{t+3}, 0x800, v{t+2}', f'v_xor_b32 v42, 0x200, v{t+1}']
    r = [f'ds_read_b32 v{VEPS}, v{t+2}', f'ds_read_b32 v{VEPS+1}, v{t+2} offset:1024',
         f'ds_read_b32 v{VEPS+2}, v{t+3}', f'ds_read_b32 v{VEPS+3}, v{t+3} offset:1024',
         f'ds_read_b32 v{NEGM}, v{t+1}', f'ds_read_b32 v{NEGM+1}, v{t+1} offset:256',
         f'ds_read_b32 v{NEGM+2}, v42', f'ds_read_b32 v{NEGM+3}, v42 offset:256']
    c = []
    for q in range(4): c.append(f'v_mul_f32 v{NEGM+q}, {fh(-1/640)}, v{NEGM+q}')
    for q in range(4): c.append(f'v_mul_f32 v{VEPS+q}, {fh(1/640)}, v{VEPS+q}')
    for q in range(4): c.append(f'v_fma_f32 v{VEPS+q}, -v{NEGM+q}, v{NEGM+q}, v{VEPS+q}')
    for q in range(4): c.append(f'v_max_f32 v{VEPS+q}, 0, v{VEPS+q}')
    for q in range(4): c.append(f'v_add_f32 v{VEPS+q}, {fh(1e-5)}, v{VEPS+q}')
    for q in range(4): c.append(f'v_rsq_f32 v{RS+q}, v{VEPS+q}')
    for q in range(4): c.append(f'v_mul_f32 v{RS+q}, s{sQS}, v{RS+q}')
    return o, r, c

def cs_write(p, half):
    o = [I(f'ds_write_b128 v{vCS}, {v4(CSA)} offset:{p*512}', tag='cs%d' % p)]
    if not half: o.append(I(f'ds_write_b128 v{vCS}, {v4(CSA+4)} offset:{p*512+256}', tag='cs%d' % p))
    return o

def epi_qkv(acc, p, dl, sc=''):
    o = []
    for jj in range(2):
        o += [f'ds_read_b128 {v4(CSV)}, v{(vCS, vCSH)[jj]} offset:{p*512}', f'ds_read_b128 {v4(CSV+4)}, v{(vCS, vCSH)[jj]} offset:{p*512+256}', Delay(dl)]
        for ch in range(2):
            ts = jj * 2 + ch
            for pr in range(2):
                d = acc + (ts * 4 + 2 * pr) * 4
                for q in (2 * pr, 2 * pr + 1):
                    a = acc + (ts * 4 + q) * 4
                    o += [f'v_fmac_f32 v{a+i}, v{NEGM+q}, v{CSV+4*ch+i}' for i in range(4)]
                    o += [f'v_mul_f32 v{a+i}, v{RS+q}, v{a+i}' for i in range(4)]
                    o += [f'v_cvt_pk_bf16_f32 v{d+2*(q&1)+i}, v{a+2*i}, v{a+2*i+1}' for i in range(2)]
                if ch: o.append(f's_add_u32 s{sQ0+2*pr+jj}, s{sQ0+2*pr+jj}, 4096')
                o.append(I(f'buffer_store_dwordx4 {v4(d)}, v{vL16}, {SRDQS}, s{sQ0+2*pr+jj} offen{sc}', tag='stq'))
    o += [f'v_mul_f32 v{RS+q}, s{sK}, v{RS+q}' for q in range(4)]
    return o

def epi_gu(acc, p, half, dl, sc=''):
    o = []
    T = TMP
    for jj in range(1 if half else 2):
        if half: o += [f'ds_read_b128 {v4(CSV)}, v{vCS} offset:{p*512}', f'ds_read_b128 {v4(CSV+4)}, v{vCSH} offset:{p*512}', Delay(dl)]
        else: o += [f'ds_read_b128 {v4(CSV)}, v{(vCS, vCSH)[jj]} offset:{p*512}', f'ds_read_b128 {v4(CSV+4)}, v{(vCS, vCSH)[jj]} offset:{p*512+256}', Delay(dl)]
        for pr in range(2):
            d = acc + (jj * 8 + 2 * pr) * 4
            for q in (2 * pr, 2 * pr + 1):
                g = acc + (jj * 8 + q) * 4; u = g + 16
                o += [f'v_fmac_f32 v{g+i}, v{NEGM+q}, v{CSV+i}' for i in range(4)]
                o += [f'v_fmac_f32 v{u+i}, v{NEGM+q}, v{CSV+4+i}' for i in range(4)]
                if half:
                    o += [f'v_cndmask_b32 v{T+i}, v{g+i}, v{u+i}, vcc' for i in range(4)]
                    o += [f'v_mul_f32 v{T+i}, v{RS+q}, v{T+i}' for i in range(4)]
                else: o += [f'v_mul_f32 v{T+i}, v{RS+q}, v{g+i}' for i in range(4)]
                o += [f'v_exp_f32 v{T+i}, v{T+i}' for i in range(4)]
                o += [f'v_mul_f32 v{g+i}, v{g+i}, v{u+i}' for i in range(4)]
                o += [f'v_fma_f32 v{T+i}, v{T+i}, v{VEPS+q}, v{VEPS+q}' for i in range(4)]
                o += [f'v_rcp_f32 v{T+i}, v{T+i}' for i in range(4)]
                o += [f'v_mul_f32 v{g+i}, v{g+i}, v{T+i}' for i in range(4)]
                o += [f'v_cvt_pk_bf16_f32 v{d+2*(q&1)+i}, v{g+2*i}, v{g+2*i+1}' for i in range(2)]
            x = (2048 if pr else 0) ^ (512 if jj else 0)
            o.append(f's_xor_b32 s{sE}, s{sH0 + (1 if half else 0)}, {x}')
            o += [Delay(1), f'v_permlane32_swap_b32 v{d}, v{d+2}', f'v_permlane32_swap_b32 v{d+1}, v{d+3}']
            o.append(I(f'buffer_store_dwordx4 {v4(d)}, v{vST}, {SRDW}, s{sE} offen{sc}', tag='sth%d' % p))
    return o

def w2_scalars(rnd):
    return L(f"""
    s_lshl_b32 s70, s{sR}, 2
    s_add_u32 s70, s70, s{sW}
    s_add_u32 s70, s70, {64*rnd}
    s_min_u32 s70, s70, 679
    s_mul_i32 s71, s70, 6554
    s_lshr_b32 s71, s71, 16
    s_mul_i32 s72, s71, 10
    s_sub_u32 s72, s70, s72
    s_lshl_b32 s72, s72, 7
    s_mul_i32 s73, s71, {32*1280}
    s_sub_u32 s75, s71, 48
    s_mul_i32 s76, s75, {40*1280}
    s_cmp_lt_u32 s71, 48
    s_cselect_b32 s8, s66, s64
    s_cselect_b32 s9, s67, s65
    s_mov_b32 s10, 1966080
    s_cselect_b32 s10, s10, 819200
    s_cselect_b32 s73, s73, s76
    s_movk_i32 s78, {8*1280-1024}
    s_cselect_b32 s77, s78, {20*1280-1024}
    s_cselect_b32 s78, s78, {(-12*1280-1024) & 0xffffffff}
    s_sub_u32 s75, s71, 64
    s_mul_i32 s76, s75, {160*1280}
    s_add_u32 s76, s76, {16*1280}
    s_cmp_lt_u32 s71, 64
    s_cselect_b32 s73, s73, s76
    s_cselect_b32 s78, s78, {60*1280-1024}
    s_cselect_b32 s79, 0, {36*1280}
    v_mad_u32_u24 v{vDW}, v{ACCA}, s79, v{ACCA+1}
    s_add_u32 s{sT}, s73, s72
    """)

def stamp(i): return I(f's_memrealtime s[{80+2*i}:{81+2*i}]')
def stamps_out(n, lbl, base=0):
    o = L(f"""
    s_waitcnt vmcnt(0) lgkmcnt(0)
    s_cmp_eq_u32 s{sW}, 0
    s_cbranch_scc0 {lbl}
    s_lshl_b32 s76, s2, 8
    s_add_u32 s76, s76, {STAMP_OFF + base*8}
    v_mov_b32 v1, 0
    s_mov_b64 exec, 1
    """)
    for i in range(n):
        o += L(f"v_mov_b32 v2, s{80+2*i}\nv_mov_b32 v3, s{81+2*i}\nbuffer_store_dwordx2 v[2:3], v1, {SRDW}, s76 offen offset:{8*i}")
    o += L(f"{lbl}:")
    return o

class Rebase:
    def __init__(self): self.base = {}
    def off(self, S, reg, addr, g, slotbase):
        b = self.base.get(reg, 0)
        if not (0 <= addr - b <= 65535):
            ins = I(f'v_add_u32 v{reg}, {(slotbase - b) & 0xffffffff}, v{reg}')
            ins.note = 'pre'
            S(g, ins); self.base[reg] = b = slotbase
        return addr - b

def build(opt):
    st = opt.get('stamps', False)
    S = Sched()
    passes = [('q', 10, ACCA), ('f', 10, ACCB), ('h', 5, ACCA)]
    stages = [(pi, k, s, acc) for pi, (k, ns, acc) in enumerate(passes) for s in range(ns)]
    NS = len(stages)
    frags = []
    first_frag = []; last_cs = {}; last_stat = None; pass_first = {}
    for gs, (pi, k, s, acc) in enumerate(stages):
        first_frag.append(len(frags))
        if s == 0: pass_first[pi] = S.n()
        if k != 'h':
            fl = [(2*s + kk, jj*2 + ch, vTR[jj], ch*8192 + kk*4096, 1024, ch if jj == 0 else None) for kk in range(2) for jj in range(2) for ch in range(2)]
        else:
            fl = [(4*s + u, ab, vTH[ab], u*2048, 512, 0 if ab == 0 else None) for u in range(4) for ab in range(2)]
            if gs == NS - 1: fl = fl[0::2] + fl[1::2]
        for fi, (ks, ts, areg, off, hs, cs) in enumerate(fl):
            ar = v4(AR + 4 * (len(frags) % 4))
            frags.append(dict(stage=gs, first=S.n(), reg=areg, off=off, hs=hs, ar=AR + 4 * (len(frags) % 4)))
            for q in range(4):
                d = v4(acc + (ts*4 + q) * 4)
                S.mfma(MF(d, ar, xreg(ks, q), '0' if ks == 0 else d))
            if cs is not None:
                d = v4(CSA + 4*cs)
                last_cs[pi] = S.mfma(MF(d, ar, v4(ONES), '0' if ks == 0 else d))
            if pi == 0 and fi < 4:
                ks2 = 2*s + (fi >> 1); q = fi & 1
                d = v4(STA + 4*q); S.mfma(MF(d, v4(ONES), xreg(ks2, q), '0' if ks2 == 0 else d))
                d = v4(STA + 8 + 4*q); last_stat = S.mfma(MF(d, xreg(ks2, q), xreg(ks2, q), '0' if ks2 == 0 else d))
    NG = S.n(); JOIN = pass_first[1]
    bar_gap = [None] + [frags[first_frag[gs] - 3]['first'] for gs in range(1, NS)]
    fx = [0, 1, 2, 3]; fw = [4, 5, 6, 7, 8]; xs = {}; wsl = {}; nx = 0; nw = 0
    issue = {}
    init = []
    while fx or fw:
        if fx: xs[nx] = fx.pop(0); init.append(('x', nx)); nx += 1
        if fw: wsl[nw] = fw.pop(0); init.append(('w', nw)); nw += 1
    for gs in range(1, NS):
        if gs - 1 < 10: (fx if nx < 10 else fw).append(xs[gs - 1])
        if gs >= 2: fw.append(wsl[gs - 2])
        l = []
        if nx < 10 and fx: xs[nx] = fx.pop(0); l.append(('x', nx)); nx += 1
        while nw < NS and fw and len(l) < 2: wsl[nw] = fw.pop(0); l.append(('w', nw)); nw += 1
        issue[gs] = l
    def item(kind, i):
        if kind == 'x': return dma_item('x', i, xs[i], 'x%d' % i)
        return dma_item(stages[i][1], stages[i][2], wsl[i], 'w%d' % i)
    def xreads(s):
        return [I(f'ds_read_b128 {xreg(2*s+kk, q)}, v{vXR[kk*2 + (q>>1)]} offset:{xs[s]*16384 + (q&1)*2048}') for kk in range(2) for q in range(4)]
    RB = Rebase(); pre = []
    def reads(F, g):
        f = frags[F]; sb = wsl[f['stage']] * 16384
        o = RB.off((lambda g, i: pre.append(i) if g < 0 else S.pin(g, i)), f['reg'], sb + f['off'], g - 1, sb)
        return [I(f"ds_read_b64_tr_b16 v[{f['ar']+2*h}:{f['ar']+2*h+1}], v{f['reg']} offset:{o + h*f['hs']}") for h in range(2)]
    first_reads = []
    for F in range(3): first_reads += reads(F, -1)
    p2pre = []; base_at_join = None
    for F in range(3, len(frags)):
        g = frags[F - 3]['first']
        r = reads(F, g)
        S.vec[g].insert(0, r[0]); S.vec[g+1].insert(0, r[1])
        if F >= first_frag[10] and g < JOIN: p2pre += r; base_at_join = dict(RB.base)
    for F in range(1, len(frags)): S.reserve(frags[F]['first'] - 1)
    sa, sw_ = stats_write(); ra, rr, rc = stats_read()
    for gs in range(1, NS):
        g = bar_gap[gs]
        tags = ['w%d' % gs, 'x%d' % gs, 'st', 'cs0', 'cs1']
        S.res[g-1] = 0; S.pin(g - 1, W(tags)); S.pin(g, 's_barrier')
    for gs in range(1, 10):
        _, left = S.flow(xreads(gs), bar_gap[gs]); assert not left
    for gs in range(1, NS):
        its = issue[gs]
        if not its: continue
        g1 = bar_gap[gs+1] - 1 if gs + 1 < NS else NG
        fl = []
        dl = 3 if len(its) > 1 else 6
        g0 = bar_gap[gs] + 1
        if gs == 10: g0 = JOIN; dl = 2 if len(its) > 1 else 4
        for kind, i in its:
            for x in item(kind, i):
                fl.append(x)
                if x.kind == 'dma': fl.append(Delay(dl))
        _, left = S.flow(fl, g0, g1)
        assert not plain(left), (gs, left)
    _, left = S.flow(sa + ra, bar_gap[8]); assert not left
    lg, left = S.flow(sw_, last_stat + 5, JOIN); assert not left
    for pi in range(2):
        _, left = S.flow(cs_write(pi, False), last_cs[pi] + 5, pass_first[pi+1] + 2); assert not left
    sc = opt.get('sc', '')
    e0 = rr + [Delay(14)] + rc + epi_qkv(ACCA, 0, 14, sc)
    lg, left = S.flow(e0, bar_gap[11] + 1, pass_first[2]); assert not left, len(left)
    print('k1: qkv epilogue ends at gap', lg, 'of', pass_first[2])
    lg, left1 = S.flow(epi_gu(ACCB, 1, False, 14, sc), bar_gap[21] + 1)
    print('k1: gu epilogue leftover', len(left1))
    g = last_cs[2] + 5
    S.vec[g].insert(0, cs_write(2, True)[0])
    S.pin(g + 4, W(['cs2'])); S.pin(g + 5, 's_barrier')
    if st:
        S.pin(JOIN - 1, stamp(2)); S.pin(pass_first[2] - 1, stamp(3))
    body = S.linear()
    ji = body.index(S.m[JOIN])
    tail = plain(left1) + plain(epi_gu(ACCA, 2, True, 0, sc))
    pro = ([stamp(0)] if st else []) + prologue(opt)
    main = L(f"s_cmp_eq_u32 s{sC}, 15\ns_cbranch_scc1 K1_alt")
    for kind, i in init: main += item(kind, i)
    main += setup2(opt) + pre + [W(['x0', 'w0']), I('s_barrier')]
    xr = xreads(0)
    main += xr[:4] + first_reads + xr[4:]
    if st: main.append(stamp(1))
    main += body[:ji] + L('K1_join:\ns_nop 0') + body[ji:]
    if st: main.append(stamp(4))
    main += tail
    main += L(f"""
    s_lshl_b32 s70, s2, 2
    s_add_u32 s70, s70, s{sW}
    s_lshl_b32 s70, s70, 2
    s_add_u32 s70, s70, {WS_FLAG}
    v_mov_b32 v1, 0
    buffer_store_dword v1, v1, {SRDW}, s70 offen
    """)
    if st: main += [I('s_waitcnt vmcnt(0)'), stamp(5)] + stamps_out(6, 'K1_nost')
    main += L('K1_end:\ns_endpgm')
    alt = L(f"""
    K1_alt:
    v_lshrrev_b32 v{ACCA}, 5, v0
    v_mul_u32_u24 v{ACCA+1}, 1280, v1
    v_add_u32 v{ACCA+1}, v{ACCA+1}, v4
    """)
    NR = 11
    def w2_issue(rnd):
        o = w2_scalars(rnd) + L(f's_add_u32 m0, s{sLW}, {(4 + rnd % 4) * 16384}')
        for i in range(4):
            o.append(I(f'buffer_load_dwordx4 v{vDW}, {SRDQ}, s{sT} offen offset:{1024*i} lds', tag='r%d' % rnd))
            if i < 3: o.append(I(f's_add_u32 s{sT}, s{sT}, s{(77, 78, 77)[i]}'))
        return o
    for i in range(4): alt += item('x', i) + w2_issue(i)
    alt += setup2(opt)
    alt += L(f"""
    s_lshl_b32 s70, s{sN}, 1
    s_add_u32 s70, s70, s{sTt}
    s_lshl_b32 s70, s70, 5
    v_xor_b32 v{ACCA+2}, s70, v{vTR[0]}
    s_add_u32 s70, s{sLW}, 65536
    v_add_u32 v{ACCA+2}, s70, v{ACCA+2}
    v_xor_b32 v{ACCA+3}, 32, v{ACCA+2}
    v_xor_b32 v{ACCA+4}, 64, v{ACCA+2}
    v_xor_b32 v{ACCA+5}, 96, v{ACCA+2}
    """) + plain(sa + ra)
    later = [(k, i) for gs in range(1, 10) for (k, i) in issue[gs] if k == 'w' and i >= 10]
    for rnd in range(NR):
        D = ACCA + 16 + 16 * (rnd % 2)
        alt += [W(['x%d' % rnd, 'r%d' % rnd])]
        if rnd < 10:
            alt += [I('s_barrier')] + xreads(rnd)
        for j in range(4):
            for h in range(2):
                alt.append(I(f'ds_read_b64_tr_b16 v[{D+4*j+2*h}:{D+4*j+2*h+1}], v{ACCA+2+j} offset:{(rnd % 4)*16384 + h*1024}'))
        if 1 <= rnd and rnd + 3 < 10: alt += item('x', rnd + 3)
        alt += L(f"""
        s_lshl_b32 s70, s{sR}, 2
        s_add_u32 s70, s70, s{sW}
        s_add_u32 s70, s70, {64*rnd}
        s_min_u32 s70, s70, 679
        s_lshl_b32 s70, s70, 12
        s_add_u32 s74, s70, {WS_W2}
        """)
        if rnd < 10:
            for kk in range(2):
                for q in range(2):
                    ks2 = 2*rnd + kk
                    d = v4(STA + 4*q); alt.append(I(MF(d, v4(ONES), xreg(ks2, q), '0' if ks2 == 0 else d)))
                    d = v4(STA + 8 + 4*q); alt.append(I(MF(d, xreg(ks2, q), xreg(ks2, q), '0' if ks2 == 0 else d)))
        for j in range(4):
            alt.append(I(f'buffer_store_dwordx4 {v4(D+4*j)}, v{vL16}, {SRDW}, s74 offen offset:{1024*j}{sc}'))
        alt.append(I('s_waitcnt lgkmcnt(0)'))
        if rnd + 4 < NR: alt += w2_issue(rnd + 4)
    alt += [I(x.text) for x in sw_] + L('s_waitcnt lgkmcnt(0)\ns_barrier')
    for k, i in later: alt += item(k, i)
    for reg in vTR:
        b = base_at_join.get(reg, 0)
        if b: alt += L(f'v_add_u32 v{reg}, {b}, v{reg}')
    alt += L('s_waitcnt vmcnt(0)\ns_barrier') + [I(x.text) for x in p2pre] + L('s_waitcnt lgkmcnt(0)')
    if st: alt += [stamp(1), stamp(2)]
    alt += L('s_branch K1_join')
    state = dict(vm=[], lg=[])
    pro = autowait(pro, state=state)
    st2 = dict(state)
    main = autowait(main, state=state); alt = autowait(alt, state=st2)
    m, a1 = hazards(pro + main, opt.get('verbose')); a, a2 = hazards(alt, opt.get('verbose'))
    print('k1: nops', a1, a2, 'est cycles/mfma', estimate(m), 'instrs', len(m), len(a))
    return m + a
```

```python
from asm import *
from cfg import *
from k1 import v4, MF, stamp
import k1

LDS = 61440 + 4 * 4608
ACF = 96; ACS = 176
SRDW = 's[16:19]'; SRDX = 's[4:7]'; SRDO = 's[8:11]'
sW = 46; sTT = 47; sCG = 48; sHP = 49; sA = 50; sB = 51; sQ = 52; sQP = 53; sO = 54; sOT = 55; sX = 56; sF = 57; sE = 58
vL16 = 1; vA2 = 2; vB = (3, 4, 5, 6); vO4 = 7; vO2 = 8
XR = 10
def v2(b): return 'v[%d:%d]' % (b, b + 1)
def M16(d, a, b, c): return 'v_mfma_f32_16x16x16_bf16 %s, %s, %s, %s' % (d, a, b, c)
NSLOT = 7
def ra(step, j): b = (step % NSLOT) * 36 + 4 * j; return 'a[%d:%d]' % (b, b + 3)
def rb(step, q): b = (step % NSLOT) * 36 + 20 + 4 * q; return 'a[%d:%d]' % (b, b + 3)

def weave(main, fill, every, start=0):
    out = []; fill = list(fill); c = 0
    for k, x in enumerate(main):
        out.append(x); c += 1
        if k >= start and c >= every and fill:
            while fill:
                y = fill.pop(0); out.append(y)
                if y.kind not in SCAL: break
            c = 0
    return out, fill

def loadA(step, sc=''):
    o = []
    for j in range(5):
        o.append(I(f'buffer_load_dwordx4 {ra(step, j)}, v{vL16 if j < 4 else vA2}, {SRDW}, s{sA} offen offset:{1024*(j%4)}{sc}'))
    o.append(I(f's_add_u32 s{sA}, s{sA}, {40960}' if step != 11 else f's_mov_b32 s{sA}, s59'))
    return o
def loadB(step, sc=''):
    o = [I(f'buffer_load_dwordx4 {rb(step, q)}, v{vB[q]}, {SRDW}, s{sB} offen{sc}') for q in range(4)]
    o.append(I(f's_add_u32 s{sB}, s{sB}, 4096' if step != 11 else f's_mov_b32 s{sB}, s60'))
    return o

QA, QB, QA4, QB4 = 20, 24, 28, 32
KA, KB, K4 = 36, 40, 44; KAP, KBP, K4P = 48, 50, 52
VO = 56; VP = 68
BO, BP, BP0 = 76, 80, 84; MO, MP = 88, 90; ONES = 92
SS = ACS
VT = ACS + 32
PP = ACS + 56
LL = ACS + 72
OO = 20
TA = ACF

def attn_loads(sc=''):
    t = TA
    o = L(f"""
    v_and_b32 v{t}, 15, v0
    v_lshrrev_b32 v{t+1}, 4, v0
    v_lshlrev_b32 v{t+2}, 4, v{t}
    v_and_b32 v{t+3}, 1, v{t+1}
    v_mul_u32_u24 v{t+3}, 1280, v{t+3}
    v_add_u32 v{t+3}, v{t+3}, v{t+2}
    v_bfrev_b32 v{t+4}, 1
    v_cmp_eq_u32 vcc, 0, v{t+1}
    v_cmp_eq_u32 s[62:63], 1, v{t+1}
    s_add_u32 s64, s{sQ}, {160*256}
    s_add_u32 s65, s{sQP}, {160*256}
    v_cndmask_b32 v{t+5}, v{t+4}, v{t+3}, vcc
    v_cndmask_b32 v{t+6}, v{t+4}, v{t+3}, s[62:63]
    s_add_u32 s66, s{sQ}, {320*256}
    s_add_u32 s67, s{sQP}, {320*256}
    s_waitcnt lgkmcnt(0)
    buffer_load_dwordx4 {v4(VO)}, v{vL16}, {SRDW}, s66 offen{sc}
    buffer_load_dwordx4 {v4(VO+4)}, v{vL16}, {SRDW}, s66 offen offset:1024{sc}
    buffer_load_dwordx4 {v4(VO+8)}, v{vL16}, {SRDW}, s66 offen offset:2048{sc}
    buffer_load_dwordx2 {v2(VP)}, v{vL16}, {SRDW}, s67 offen offset:8{sc}
    buffer_load_dwordx2 {v2(VP+2)}, v{vL16}, {SRDW}, s67 offen offset:1032{sc}
    buffer_load_dwordx2 {v2(VP+4)}, v{vL16}, {SRDW}, s67 offen offset:2056{sc}
    buffer_load_dwordx4 {v4(QA)}, v{vL16}, {SRDW}, s{sQ} offen{sc}
    buffer_load_dwordx4 {v4(KA)}, v{vL16}, {SRDW}, s64 offen{sc}
    buffer_load_dwordx2 {v2(KAP)}, v{vL16}, {SRDW}, s65 offen offset:8{sc}
    buffer_load_dwordx4 {v4(QB)}, v{vL16}, {SRDW}, s{sQ} offen offset:1280{sc}
    buffer_load_dwordx4 {v4(KB)}, v{vL16}, {SRDW}, s64 offen offset:1280{sc}
    buffer_load_dwordx2 {v2(KBP)}, v{vL16}, {SRDW}, s65 offen offset:1288{sc}
    buffer_load_dwordx4 {v4(QA4)}, v{t+5}, {SRDW}, s{sQ} offen offset:1024{sc}
    buffer_load_dwordx4 {v4(QB4)}, v{t+6}, {SRDW}, s{sQ} offen offset:1024{sc}
    buffer_load_dwordx4 {v4(K4)}, v{t+3}, {SRDW}, s64 offen offset:1024{sc}
    buffer_load_dwordx2 {v2(K4P)}, v{t+3}, {SRDW}, s65 offen offset:1032{sc}
    """)
    return o

def attn_consts():
    t = TA
    o = L(f"""
    v_lshlrev_b32 v{t+7}, 2, v{t+1}
    v_and_b32 v{t+8}, 1, v{t}
    v_mov_b32 v{t+9}, {fh(-1e30)}
    v_mov_b32 v{t+10}, 0xffff
    v_lshlrev_b32 v{t+11}, 4, v{t+8}
    v_lshlrev_b32 v{t+10}, v{t+11}, v{t+10}
    v_add_u32 v{t+11}, v{t+7}, v{t+8}
    v_cmp_eq_u32 s[62:63], 0, v{t+8}
    v_cmp_le_u32 s[64:65], v{t+11}, v{t}
    v_add_u32 v{t+11}, 2, v{t+11}
    v_cmp_le_u32 s[66:67], v{t+11}, v{t}
    s_cmp_eq_u32 s{sQ}, s{sQP}
    s_cselect_b64 s[68:69], 0, -1
    """)
    for j in range(2):
        own = f's[{64+2*j}:{65+2*j}]'
        o += L(f"""
        v_cndmask_b32 v{MO+j}, 0, v{t+10}, {own}
        v_cndmask_b32 v{MP+j}, v{t+10}, 0, {own}
        s_and_b64 s[70:71], {own}, s[62:63]
        s_andn2_b64 s[72:73], {own}, s[62:63]
        s_andn2_b64 s[74:75], s[62:63], {own}
        s_nor_b64 s[76:77], s[62:63], {own}
        v_cndmask_b32 v{BO+2*j}, v{t+9}, 0, s[70:71]
        v_cndmask_b32 v{BO+2*j+1}, v{t+9}, 0, s[72:73]
        v_cndmask_b32 v{BP+2*j}, v{t+9}, 0, s[74:75]
        v_cndmask_b32 v{BP+2*j+1}, v{t+9}, 0, s[76:77]
        v_cndmask_b32 v{BP0+2*j}, v{t+9}, v{BP+2*j}, s[68:69]
        v_cndmask_b32 v{BP0+2*j+1}, v{t+9}, v{BP+2*j+1}, s[68:69]
        """)
    o += [I(f'v_mov_b32 v{ONES+i}, 0x3f803f80') for i in range(4)]
    o += L(f"""
    s_mul_i32 s{sE}, s{sW}, 4608
    s_add_u32 s{sE}, s{sE}, 61440
    v_add_u32 v{t+12}, s{sE}, v{vL16}
    v_lshl_add_u32 v{t+13}, v0, 3, s{sE}
    v_lshrrev_b32 v{t+7}, 2, v0
    v_and_b32 v{t+8}, 3, v0
    v_lshl_add_u32 v{t+15}, v{t+7}, 4, s{sE}
    v_lshl_add_u32 v{t+14}, v{t+8}, 8, v{t+15}
    v_lshl_add_u32 v{t+17}, v{t+7}, 3, s{sE}
    v_lshl_add_u32 v{t+16}, v{t+8}, 7, v{t+17}
    """)
    return o

def attn_compute(sc):
    t = TA; o = []
    for i in range(3): o.append(f'ds_write_b128 v{t+12}, {v4(VO+4*i)} offset:{1024*i}')
    for i in range(3): o.append(f'ds_write_b64 v{t+13}, {v2(VP+2*i)} offset:{3072+512*i}')
    for X in range(2):
        for tail in range(2):
            b = VT + 12*X + 6*tail; fg = 5*X + 4*tail
            o.append(f'ds_read_b64_tr_b16 {v2(b)}, v{t+16+tail} offset:{3072 + fg*128}')
            o.append(f'ds_read_b64_tr_b16 {v2(b+2)}, v{t+14+tail} offset:{fg*256}')
            o.append(f'ds_read_b64_tr_b16 {v2(b+4)}, v{t+14+tail} offset:{fg*256+8}')
    U = [(X, f) for X in range(2) for f in range(2)]
    for u, (X, f) in enumerate(U):
        q = (QA, QB)[X] + 2*f; k = (KA, KB)[X]
        o.append(M16(v4(SS+8*u), v2(k+2*f), v2(q), v4(BO)))
        o.append(M16(v4(SS+8*u+4), v2((KAP, KBP)[X] if f == 0 else k), v2(q), v4(BP0 if f == 0 else BP)))
    for u, (X, f) in enumerate(U):
        q = (QA4, QB4)[X] + 2*f
        o.append(M16(v4(SS+8*u), v2(K4+2*f), v2(q), v4(SS+8*u)))
        o.append(M16(v4(SS+8*u+4), v2(K4P if f == 0 else K4), v2(q), v4(SS+8*u+4)))
    for u in range(4):
        s = SS + 8*u
        o += [f'v_max3_f32 v{LL+2*u}, v{s}, v{s+1}, v{s+4}', f'v_max3_f32 v{LL+2*u+1}, v{s+2}, v{s+3}, v{s+6}',
              f'v_max_f32 v{LL+2*u}, v{LL+2*u}, v{s+5}', f'v_max_f32 v{LL+2*u+1}, v{LL+2*u+1}, v{s+7}',
              f'v_max_f32 v{s}, v{LL+2*u}, v{LL+2*u+1}']
    m = [SS + 8*u for u in range(4)]
    o += [f'v_permlane32_swap_b32 v{m[0]}, v{m[1]}', f'v_permlane32_swap_b32 v{m[2]}, v{m[3]}',
          f'v_max_f32 v{m[0]}, v{m[0]}, v{m[1]}', f'v_max_f32 v{m[2]}, v{m[2]}, v{m[3]}',
          f'v_permlane16_swap_b32 v{m[0]}, v{m[2]}',
          f'v_max_f32 v{m[0]}, v{m[0]}, v{m[2]}', f'v_mov_b32 v{m[2]}, v{m[0]}',
          f'v_permlane16_swap_b32 v{m[0]}, v{m[2]}',
          f'v_mov_b32 v{m[1]}, v{m[0]}', f'v_mov_b32 v{m[3]}, v{m[2]}',
          f'v_permlane32_swap_b32 v{m[0]}, v{m[1]}', f'v_permlane32_swap_b32 v{m[2]}, v{m[3]}']
    for u in range(4): o += [f'v_sub_f32 v{LL+2*u+j}, v{LL+2*u+j}, v{m[u]}' for j in range(2)]
    for u in range(4): o += [f'v_exp_f32 v{LL+2*u+j}, v{LL+2*u+j}' for j in range(2)]
    for u in range(4): o += [f'v_cvt_pk_bf16_f32 v{LL+2*u+j}, v{LL+2*u+j}, v{LL+2*u+j}' for j in range(2)]
    for u in range(4):
        for j in range(2): o += [f'v_and_b32 v{PP+4*u+j}, v{MP+j}, v{LL+2*u+j}', f'v_and_b32 v{PP+4*u+2+j}, v{MO+j}, v{LL+2*u+j}']
    for u, (X, f) in enumerate(U): o.append(MF(v4(OO+12*u+8), v4(ONES), v4(PP+4*u), '0'))
    for u, (X, f) in enumerate(U):
        o.append(MF(v4(OO+12*u), v4(VT+12*X+2*f), v4(PP+4*u), '0'))
        o.append(MF(v4(OO+12*u+4), v4(VT+12*X+6+2*f), v4(PP+4*u), '0'))
    for u in range(4): o.append(f'v_rcp_f32 v{OO+12*u+8}, v{OO+12*u+8}')
    for f in range(2):
        for X in range(2):
            u = 2*X + f; b = OO + 12*u
            o += [f'v_mul_f32 v{b+i}, v{b+8}, v{b+i}' for i in range(8)]
            o += [f'v_cvt_pk_bf16_f32 v{SS+8*f+2*X+i}, v{b+2*i}, v{b+2*i+1}' for i in range(2)]
            o += [f'v_cvt_pk_bf16_f32 v{SS+8*f+4+2*X+i}, v{b+4+2*i}, v{b+4+2*i+1}' for i in range(2)]
        o.append(I(f'buffer_store_dwordx4 {v4(SS+8*f)}, v{vL16}, {SRDW}, s{sO} offen offset:{1024*f} sc1', tag='o'))
        o.append(I(f'buffer_store_dwordx4 {v4(SS+8*f+4)}, v{t+5}, {SRDW}, s{sOT} offen offset:{1024*f} sc1', tag='o'))
    return plain(o)

def build(opt):
    st = opt.get('stamps', False)
    p = ([stamp(0)] if st else []) + L(f"""
    s_cmp_ge_u32 s2, 256
    s_cbranch_scc1 K2_end
    s_load_dwordx2 s[16:17], s[0:1], 72
    s_load_dwordx2 s[4:5], s[0:1], 0
    s_load_dwordx2 s[8:9], s[0:1], 56
    s_getpc_b64 s[68:69]
    v_lshlrev_b32 v1, 6, v0
    v_lshrrev_b32 v2, 6, v0
    global_load_dword v9, v1, s[68:69]
    v_readfirstlane_b32 s{sW}, v2
    v_and_b32 v0, 63, v0
    v_lshlrev_b32 v{vL16}, 4, v0
    s_and_b32 s70, s2, 7
    s_lshr_b32 s71, s2, 3
    s_lshr_b32 s72, s70, 1
    s_lshl_b32 s72, s72, 3
    s_and_b32 s73, s71, 7
    s_add_u32 s{sTT}, s72, s73
    s_and_b32 s70, s70, 1
    s_lshl_b32 s70, s70, 2
    s_lshr_b32 s71, s71, 3
    s_add_u32 s{sCG}, s70, s71
    s_mov_b32 s18, {WS_SIZE}
    s_mov_b32 s19, 0x20000
    s_lshr_b32 s70, s{sW}, 1
    s_lshl_b32 s{sHP}, s{sCG}, 1
    s_add_u32 s{sHP}, s{sHP}, s70
    s_and_b32 s71, s{sW}, 1
    s_lshl_b32 s72, s{sTT}, 1
    s_add_u32 s72, s72, s71
    s_mul_i32 s73, s{sHP}, 2560
    s_mul_i32 s{sQ}, s72, 122880
    s_add_u32 s{sQ}, s{sQ}, s73
    s_sub_u32 s{sQP}, s{sQ}, 122880
    s_cselect_b32 s{sQP}, s{sQ}, s{sQP}
    """)
    p += attn_loads()
    p += L(f"""
    s_mul_i32 s74, s{sTT}, {68*4096}
    s_add_u32 s74, s74, {WS_HO}
    s_mul_i32 s75, s{sW}, {12*4096}
    s_add_u32 s{sB}, s74, s75
    s_mul_i32 s75, s{sW}, {5*4096}
    s_add_u32 s60, s74, s75
    s_add_u32 s60, s60, {48*4096}
    s_mul_i32 s76, s{sCG}, 5120
    s_add_u32 s76, s76, {WS_W2}
    s_mul_i32 s75, s{sW}, {12*40960}
    s_add_u32 s{sA}, s76, s75
    s_mul_i32 s75, s{sW}, {5*40960}
    s_add_u32 s59, s76, s75
    s_add_u32 s59, s59, {48*40960}
    s_lshl_b32 s75, s{sW}, 10
    v_add_u32 v{vA2}, 4096, v{vL16}
    v_add_u32 v{vB[0]}, s75, v{vL16}
    v_xor_b32 v{vB[1]}, 1024, v{vB[0]}
    v_xor_b32 v{vB[2]}, 2048, v{vB[0]}
    v_xor_b32 v{vB[3]}, 3072, v{vB[0]}
    """)
    D0 = opt.get('d0', 3); D1 = opt.get('d1', 6); DS = opt.get('ds', 5)
    for s in range(D0): p += loadA(s) + loadB(s)
    t = TA
    p += L(f"""
    s_lshl_b32 s71, s71, 11
    s_add_u32 s74, s74, s71
    s_add_u32 s75, s{sHP}, 48
    s_lshl_b32 s75, s75, 12
    s_add_u32 s{sO}, s74, s75
    s_lshr_b32 s75, s{sHP}, 2
    s_add_u32 s75, s75, 64
    s_lshl_b32 s75, s75, 12
    s_add_u32 s{sOT}, s74, s75
    s_and_b32 s75, s{sHP}, 3
    s_lshl_b32 s75, s75, 8
    s_add_u32 s{sOT}, s{sOT}, s75
    s_lshl_b32 s75, s{sTT}, 2
    s_add_u32 s75, s75, s{sW}
    s_mul_i32 s75, s75, {16*1280}
    s_mul_i32 s76, s{sCG}, 160
    s_add_u32 s{sX}, s75, s76
    s_lshl_b32 s75, s{sTT}, 7
    s_add_u32 s{sF}, s75, {WS_FLAG}
    s_mov_b32 s61, 0x80000
    s_mov_b32 s6, 2621440
    s_mov_b32 s7, 0x20000
    s_mov_b32 s10, 2621440
    s_mov_b32 s11, 0x20000
    v_mul_u32_u24 v{t+7}, 1280, v{t}
    v_lshl_add_u32 v{vO2}, v{t+1}, 3, v{t+7}
    v_and_b32 v{t+8}, 1, v{t+1}
    v_lshl_add_u32 v{t+7}, v{t+8}, 5, v{t+7}
    v_lshrrev_b32 v{t+8}, 1, v{t+1}
    v_lshl_add_u32 v{vO4}, v{t+8}, 4, v{t+7}
    """)
    p += attn_consts()
    fill = []
    for s in range(D0, D1): fill += loadA(s) + loadB(s)
    ac = attn_compute('')
    if st: ac.insert(1, stamp(1))
    body, fill = weave(ac, fill, opt.get('ev', 7), start=20)
    p += body + fill
    if st: p.append(stamp(2))
    S = Sched(); first = []
    for s in range(17):
        first.append(S.n())
        acc = ACF if s < 12 else ACS
        for j in range(5):
            for q in range(4):
                d = v4(acc + (q*5 + j) * 4)
                S.mfma(MF(d, ra(s, j), rb(s, q), '0' if s in (0, 12) else d))
    first.append(S.n())
    def spread(l, d=2):
        o = []
        for x in l:
            o.append(x)
            if x.kind == 'vld': o.append(Delay(d))
        return o
    for s in range(1, 17):
        for g in range(first[s] - 1, first[s] + 3): S.reserve(g)
        for j in range(1, 5): S.reserve(first[s] + 4*j - 1)
    gp = opt.get('gp', 16)
    S.res[gp] = 0; S.pin(gp, W('o')); S.pin(gp + 1, 's_barrier')
    pub = L(f"""
    s_lshl_b32 s{sE}, s{sCG}, 2
    s_add_u32 s{sE}, s{sE}, s{sF}
    v_mov_b32 v20, 1
    v_bfrev_b32 v21, 1
    v_cmp_eq_u32 vcc, 0, v{vB[0]}
    v_and_b32 v22, 7, v0
    v_lshlrev_b32 v22, 2, v22
    v_cndmask_b32 v21, v21, v{vB[0]}, vcc
    """)
    S.flow(pub, 2, gp)
    S.pin(gp + 1, f'buffer_store_dword v20, v21, {SRDW}, s{sE} offen sc1')
    nxt = D1; lastg = -1
    PS = opt.get('ps', 9)
    for s in range(0, 12):
        l = []
        if s == 1:
            l += L(f"""
            buffer_load_dwordx4 {v4(XR)}, v{vO4}, {SRDX}, s{sX} offen
            buffer_load_dwordx4 {v4(XR+4)}, v{vO4}, {SRDX}, s{sX} offen offset:64
            buffer_load_dwordx2 {v2(XR+8)}, v{vO2}, {SRDX}, s{sX} offen offset:128
            """)
        if s == PS - 1: l.append(I(f'buffer_load_dword v23, v22, {SRDW}, s{sF} offen sc1', tag='poll'))
        while nxt < 17 and nxt <= s + DS and nxt - NSLOT < s:
            l += loadA(nxt) + (loadB(nxt) if nxt < 12 else []); nxt += 1
            if nxt <= 12: break
        if s == PS + 1:
            for k in range(12, 17):
                assert k - NSLOT < s
                l += loadB(k, ' sc1')
        g0 = max(first[s], lastg + 1)
        lastg, left = S.flow(spread(l, 2 if len(l) < 14 else 1), g0, first[s+2]); assert not plain(left), (s, len(left))
    assert nxt == 17
    wr = lambda acc, tag: [I(f'ds_write_b128 v{vB[q]}, {v4(acc + (q*5+j)*4)} offset:{(q-1)*20480 + j*4096}', tag=tag) for j in range(5) for q in range(1, 4)]
    rd = lambda acc: [I(f'ds_read_b128 {v4(acc + (q*5+j)*4)}, v{vB[0]} offset:{(q-1)*20480 + j*4096}') for j in range(5) for q in range(1, 4)]
    XF = 24
    xun = [f'v_permlane16_swap_b32 v{XR+4*pp+i}, v{XR+4*pp+2+i}' for pp in range(2) for i in range(2)] + [Delay(1)]
    for k in range(10): xun += [f'v_lshlrev_b32 v{XF+2*k}, 16, v{XR+k}', f'v_and_b32 v{XF+2*k+1}, 0xffff0000, v{XR+k}']
    _, left = S.flow(xun, first[8]); assert not left
    w_ = []
    for x in wr(ACF, 'rf'): w_ += [x, Delay(1)]
    g, left = S.flow(w_, first[12] + 4); assert not plain(left)
    S.pin(g + 3, W('rf')); S.pin(g + 4, 's_barrier')
    r_ = []
    for x in rd(ACF): r_ += [x, Delay(1)]
    e = r_ + [Delay(4)]
    T = 44
    for j in range(5):
        a = ACF + 4*j
        for q in range(1, 4): e += [f'v_add_f32 v{a+i}, v{a+i}, v{a+20*q+i}' for i in range(4)]
    e += ['s_barrier']
    for j in range(5):
        a = ACF + 4*j
        e += [f'v_mul_f32 v{T+i}, {fh(-LOG2E)}, v{a+i}' for i in range(4)]
        e += [f'v_exp_f32 v{T+i}, v{T+i}' for i in range(4)]
        e += [f'v_add_f32 v{T+i}, 1.0, v{T+i}' for i in range(4)]
        e += [f'v_rcp_f32 v{T+i}, v{T+i}' for i in range(4)]
        e += [f'v_mul_f32 v{a+i}, v{a+i}, v{T+i}' for i in range(4)]
    g, left = S.flow(e, g + 4)
    left = plain(left)
    print('k2: f epilogue leftover', len(left))
    assert not any(x.kind == 'barrier' for x in left)
    if st: S.pin(first[12] - 1, stamp(4))
    body = S.linear()
    pi = body.index(S.m[first[PS + 1]])
    poll = L(f"""
    K2_poll:
    v_cmp_ne_u32 vcc, 1, v23
    s_cbranch_vccz K2_go
    buffer_load_dword v23, v22, {SRDW}, s{sF} offen sc1
    s_sub_u32 s61, s61, 1
    s_waitcnt vmcnt(0)
    s_cbranch_scc0 K2_poll
    K2_go:
    """)
    state = dict(vm=[], lg=[])
    a = autowait(p + body[:pi] + [W('poll')], state=state)
    if st: poll.append(stamp(3)); poll.append(I('s_waitcnt lgkmcnt(0)')); state['lg'] = []
    tail = body[pi:]
    if st: tail.append(stamp(5))
    tail += wr(ACS, 'rs') + left
    for j in range(5): tail += [I(f'v_fmac_f32 v{XF+4*j+i}, v{ACS+4*j+i}, v{ACF+4*j+i}') for i in range(4)]
    tail += [W('rs'), I('s_barrier')] + rd(ACS)
    OUT = 44
    for j in range(5):
        for q in range(1, 4): tail += [I(f'v_fmac_f32 v{XF+4*j+i}, v{ACS+20*q+4*j+i}, v{ACF+4*j+i}') for i in range(4)]
        tail += [I(f'v_cvt_pk_bf16_f32 v{OUT+2*j+i}, v{XF+4*j+2*i}, v{XF+4*j+2*i+1}') for i in range(2)]
        if j in (1, 3):
            b = OUT + 2*(j-1)
            tail += L(f"""
            v_permlane16_swap_b32 v{b}, v{b+2}
            v_permlane16_swap_b32 v{b+1}, v{b+3}
            buffer_store_dwordx4 {v4(b)}, v{vO4}, {SRDO}, s{sX} offen offset:{32*(j-1)}
            """)
    tail += L(f'buffer_store_dwordx2 {v2(OUT+8)}, v{vO2}, {SRDO}, s{sX} offen offset:128')
    if st: tail += [I('s_waitcnt vmcnt(0)'), stamp(6)] + k1.stamps_out(7, 'K2_nost', base=6)
    tail += L('K2_end:\ns_endpgm')
    b = autowait(tail, state=state)
    m, n = hazards(a + poll + b, opt.get('verbose'))
    print('k2: nops', n, 'est', estimate(m), 'instrs', len(m))
    return m
```

```python
import sys, argparse
sys.path.insert(0, 'gen')
from asm import *
from cfg import *
import k1
HDR = open('cdna_kernels/%s.s.ref' % NAME).read().split('; Override launch')[0]
def desc(name, vgpr=512, accum=256, sgpr=102):
    return f""".amdhsa_kernel {name}
  .amdhsa_next_free_vgpr {vgpr}
  .amdhsa_next_free_sgpr {sgpr}
  .amdhsa_accum_offset {accum}
  .amdhsa_group_segment_fixed_size 0
  .amdhsa_kernarg_size 80
  .amdhsa_user_sgpr_count 2
  .amdhsa_user_sgpr_kernarg_segment_ptr 1
  .amdhsa_system_sgpr_workgroup_id_x 1
.end_amdhsa_kernel
"""
def make(out, opt):
    ks = [('k1_kernel', k1.build(opt), 163840)]
    if not opt.get('k1only'):
        import k2
        ks.append(('k2_kernel', k2.build(opt), k2.LDS))
    for i in range(opt.get('emptyend', 0)): ks.append(('e%d_kernel' % i, L('s_endpgm'), 0))
    if opt.get('emptyfirst'): ks.insert(0, ('f_kernel', L('s_endpgm'), 0))
    s = HDR
    for n, c, lds in ks: s += f"; @launch kernel={n} grid=(256,1,1) block=(256,1,1) lds={lds}\n"
    s += '.amdgcn_target "amdgcn-amd-amdhsa--gfx950"\n.text\n'
    for n, c, lds in ks:
        s += f".globl {n}\n.p2align 8\n.type {n},@function\n{n}:\n" + render(c)
    s += ".p2align 8\n.fill 8192, 4, 0xbf810000\n"
    s += '.section .rodata,"a"\n'
    for n, c, lds in ks: s += ".p2align 6\n" + desc(n)
    open(out, 'w').write(s)
if __name__ == '__main__':
    out = sys.argv[1]; opt = {}
    for a in sys.argv[2:]:
        k, _, v = a.partition('=')
        opt[k] = eval(v) if v else True
    make(out, opt)
```

```python
import sys, argparse
sys.path.insert(0, 'gen')
from asm import *
from cfg import *
import k1
HDR = open('cdna_kernels/%s.s.ref' % NAME).read().split('; Override launch')[0]
def desc(name, vgpr=512, accum=256, sgpr=102):
    return f""".amdhsa_kernel {name}
  .amdhsa_next_free_vgpr {vgpr}
  .amdhsa_next_free_sgpr {sgpr}
  .amdhsa_accum_offset {accum}
  .amdhsa_group_segment_fixed_size 0
  .amdhsa_kernarg_size 80
  .amdhsa_user_sgpr_count 2
  .amdhsa_user_sgpr_kernarg_segment_ptr 1
  .amdhsa_system_sgpr_workgroup_id_x 1
.end_amdhsa_kernel
"""
def make(out, opt):
    ks = [('k1_kernel', k1.build(opt), 163840)]
    if not opt.get('k1only'):
        import k2
        ks.append(('k2_kernel', k2.build(opt), k2.LDS))
    for i in range(opt.get('emptyend', 0)): ks.append(('e%d_kernel' % i, L('s_endpgm'), 0))
    if opt.get('emptyfirst'): ks.insert(0, ('f_kernel', L('s_endpgm'), 0))
    if opt.get('spin'):
        ks.append(('z_kernel', L(f'''
        s_cmp_eq_u32 s2, 0
        s_cbranch_scc0 Z_end
        s_load_dwordx2 s[4:5], s[0:1], 72
        s_waitcnt lgkmcnt(0)
        s_add_u32 s4, s4, {STAMP_OFF + 8*opt.get('spinidx', 0)}
        s_addc_u32 s5, s5, 0
        s_load_dwordx2 s[6:7], s[4:5], 0
        s_mov_b32 s10, 20000
        s_waitcnt lgkmcnt(0)
        Z_loop:
        s_memrealtime s[8:9]
        s_waitcnt lgkmcnt(0)
        s_sub_u32 s10, s10, 1
        s_cbranch_scc1 Z_end
        s_sub_u32 s8, s8, s6
        s_cmp_lt_u32 s8, {opt['spin']*100}
        s_cbranch_scc1 Z_loop
        Z_end:
        s_endpgm'''), 0))
    s = HDR
    for n, c, lds in ks: s += f"; @launch kernel={n} grid=(256,1,1) block=(256,1,1) lds={lds}\n"
    s += '.amdgcn_target "amdgcn-amd-amdhsa--gfx950"\n.text\n'
    for n, c, lds in ks:
        s += f".globl {n}\n.p2align 8\n.type {n},@function\n{n}:\n" + render(c)
    s += ".p2align 8\n.fill 8192, 4, 0xbf810000\n"
    s += '.section .rodata,"a"\n'
    for n, c, lds in ks: s += ".p2align 6\n" + desc(n)
    open(out, 'w').write(s)
if __name__ == '__main__':
    out = sys.argv[1]; opt = {}
    for a in sys.argv[2:]:
        k, _, v = a.partition('=')
        opt[k] = eval(v) if v else True
    make(out, opt)
```

```python
import re

REG = re.compile(r'(?<![\w.])([vas])(?:\[(\d+):(\d+)\]|(\d+))(?![\w])')
TRANS = ('v_exp_f32', 'v_log_f32', 'v_rcp_f32', 'v_rsq_f32', 'v_sqrt_f32', 'v_sin_f32', 'v_cos_f32')

def regs_of(op):
    out = []
    op = op.strip()
    for m in REG.finditer(op):
        k = m.group(1)
        if m.group(4) is not None: out.append((k, int(m.group(4))))
        else: out += [(k, i) for i in range(int(m.group(2)), int(m.group(3)) + 1)]
    for nm in ('vcc', 'exec', 'm0'):
        if re.search(r'(?<![\w])' + nm + r'(_lo|_hi)?(?![\w])', op): out.append(('x', nm))
    return out

class I:
    __slots__ = ('text', 'kind', 'defs', 'uses', 'tag', 'srcc', 'srcab', 'wide_data', 'op', 'vm', 'lg', 'waittags', 'note')
    def __init__(self, text, tag=None):
        self.text = text; self.tag = tag; self.srcc = (); self.srcab = (); self.wide_data = ()
        self.vm = None; self.lg = None; self.waittags = None; self.note = None
        t = text.split(';')[0].strip()
        if t.endswith(':') or t.startswith('.') or not t:
            self.kind = 'label' if t.endswith(':') else 'dir'; self.defs = (); self.uses = (); self.op = t; return
        sp = t.split(None, 1)
        op = self.op = sp[0]
        ops = [o.strip() for o in sp[1].split(',')] if len(sp) > 1 else []
        R = [regs_of(o) for o in ops]
        flat = lambda L: [r for x in L for r in x]
        d = []; u = []
        if op.startswith('v_mfma'):
            k = 'mfma'; d = R[0]; u = flat(R[1:]); self.srcc = tuple(R[3]); self.srcab = tuple(R[1] + R[2])
        elif op.startswith('ds_read'): k = 'dsr'; d = R[0]; u = flat(R[1:])
        elif op.startswith('ds_write') or op.startswith('ds_add'): k = 'dsw'; u = flat(R)
        elif op.startswith('buffer_load') or op.startswith('global_load'):
            if re.search(r'\blds\b', t): k = 'dma'; u = flat(R) + [('x', 'm0')]
            else: k = 'vld'; d = R[0]; u = flat(R[1:])
        elif op.startswith('buffer_store') or op.startswith('global_store') or op.startswith('buffer_atomic') or op.startswith('global_atomic'):
            k = 'vst'; u = flat(R)
            if 'x4' in op or 'x3' in op: self.wide_data = tuple(R[0] if op.startswith('buffer') else R[1])
        elif op.startswith('buffer_'): k = 'vst'
        elif op == 's_waitcnt': k = 'wait'
        elif op == 's_nop': k = 'nop'
        elif op == 's_barrier': k = 'barrier'
        elif op.startswith('s_cbranch') or op in ('s_branch', 's_endpgm', 's_setpc_b64'):
            k = 'branch'
            if 'vcc' in op: u = [('x', 'vcc')]
            if 'exec' in op: u = [('x', 'exec')]
        elif op.startswith('s_load') or op.startswith('s_memtime') or op.startswith('s_memrealtime'):
            k = 'smem'; d = R[0]; u = flat(R[1:])
        elif op.startswith('s_cmp') or op in ('s_setprio', 's_sleep', 's_bitcmp0_b32', 's_bitcmp1_b32'): k = 'salu'; u = flat(R)
        elif op.startswith('s_'):
            k = 'salu'; d = R[0]; u = flat(R[1:])
            if 'saveexec' in op: d = d + [('x', 'exec')]; u = u + [('x', 'exec')]
            if op.startswith('s_addk') or op.startswith('s_mulk'): u = u + d
        elif op.startswith('v_'):
            base = re.sub(r'_e(32|64)$', '', op)
            k = 'trans' if base in TRANS else 'valu'
            if op.startswith('v_permlane') or op.startswith('v_swap'): d = R[0] + R[1]; u = R[0] + R[1]
            else:
                d = R[0]; u = flat(R[1:])
                if base.startswith('v_fmac') or base.startswith('v_mac') or base.startswith('v_writelane'): u = u + d
                if '_co_' in base: d = R[0] + R[1]; u = flat(R[2:])
                if base.startswith('v_cmpx'): d = d + [('x', 'exec')]
        else: raise ValueError('unknown op: ' + text)
        self.kind = k; self.defs = tuple(d); self.uses = tuple(u)
    def __repr__(self): return self.text

def W(tags, lg0=False):
    i = I('s_waitcnt ?'); i.kind = 'wait'; i.waittags = tuple(tags) if not isinstance(tags, str) else (tags,)
    return i

VMK = ('vld', 'vst', 'dma'); LGK = ('dsr', 'dsw')
SCAL = ('salu', 'wait', 'barrier', 'nop', 'smem')

def parse_wait(i):
    m = re.search(r'vmcnt\((\d+)\)', i.text); i.vm = int(m.group(1)) if m else None
    m = re.search(r'lgkmcnt\((\d+)\)', i.text); i.lg = int(m.group(1)) if m else None
def fmt_wait(i):
    p = []
    if i.vm is not None: p.append('vmcnt(%d)' % i.vm)
    if i.lg is not None: p.append('lgkmcnt(%d)' % i.lg)
    i.text = 's_waitcnt ' + ' '.join(p)

def autowait(seq, hoist=True, state=None):
    out = []
    vmq = list(state['vm']) if state else []
    lgq = list(state['lg']) if state else []
    def put(vm_op, lg_op):
        pos = len(out)
        if hoist:
            p = pos
            while p > 0:
                x = out[p-1]
                if x.kind == 'mfma': pos = p; break
                if x is vm_op or x is lg_op or x.kind in ('label', 'branch', 'barrier', 'dir'): break
                p -= 1
        after = out[pos:]
        w = None
        if pos < len(out) and out[pos].kind == 'wait': w = out[pos]; after = out[pos+1:]
        elif pos > 0 and out[pos-1].kind == 'wait': w = out[pos-1]
        if w is None:
            w = I('s_waitcnt x'); out.insert(pos, w)
        if vm_op is not None:
            idx = vmq.index(vm_op)
            n = len(vmq) - 1 - idx - sum(1 for x in after if x.kind in VMK)
            assert n >= 0
            n = min(n, 63)
            w.vm = n if w.vm is None else min(w.vm, n)
            del vmq[:idx+1]
        if lg_op is not None:
            idx = lgq.index(lg_op)
            na = sum(1 for x in after if x.kind in LGK or x.kind == 'smem')
            if any(x.kind == 'smem' for x in lgq[:len(lgq)-na]):
                n = 0; del lgq[:len(lgq)-na]
            else:
                n = len(lgq) - 1 - idx - na
                assert n >= 0
                if n > 15:
                    n = 15; idx = len(lgq) - na - 1 - 15
                del lgq[:idx+1]
            w.lg = n if w.lg is None else min(w.lg, n)
        fmt_wait(w)
    for i in seq:
        if i.kind == 'wait':
            if i.waittags is not None:
                vm_op = lg_op = None
                for x in vmq:
                    if x.tag in i.waittags: vm_op = x
                for x in lgq:
                    if x.tag in i.waittags: lg_op = x
                if vm_op is not None or lg_op is not None: put(vm_op, lg_op)
                continue
            parse_wait(i)
            if i.vm is not None: del vmq[:max(0, len(vmq) - i.vm)]
            if i.lg is not None:
                if i.lg == 0 or not any(x.kind == 'smem' for x in lgq): del lgq[:max(0, len(lgq) - i.lg)]
            out.append(i); continue
        touch = set(i.uses) | set(i.defs)
        vm_op = lg_op = None
        if touch:
            for x in vmq:
                if x.defs and touch.intersection(x.defs): vm_op = x
            for x in lgq:
                if x.defs and touch.intersection(x.defs):
                    if i.kind == 'dsr' and x.kind == 'dsr' and not set(i.uses).intersection(x.defs): continue
                    lg_op = x
        if vm_op is not None or lg_op is not None: put(vm_op, lg_op)
        out.append(i)
        if i.kind in VMK:
            vmq.append(i)
            assert len(vmq) <= 63, 'too many vm ops outstanding at ' + i.text
        if i.kind in LGK or i.kind == 'smem': lgq.append(i)
    if state is not None: state['vm'] = vmq; state['lg'] = lgq
    return out

def states(i):
    if i.kind in ('label', 'dir'): return 0
    if i.kind == 'nop': return int(i.text.split()[1]) + 1
    return 1

def need_dist(p, c):
    n = 0
    pd = set(p.defs); cu = set(c.uses); cd = set(c.defs)
    if p.kind in ('valu', 'trans'):
        vd = {r for r in pd if r[0] in 'va'}; sd = {r for r in pd if r[0] == 's' or r == ('x', 'vcc')}
        if c.kind == 'mfma' and vd & cu: n = max(n, 2)
        if c.kind == 'mfma' and ('x', 'exec') in pd: n = max(n, 4)
        if p.kind == 'trans' and c.kind in ('valu', 'trans') and vd & cu: n = max(n, 1)
        if c.kind in ('valu', 'trans') and sd & cu: n = max(n, 4 if c.op.startswith(('v_readlane', 'v_writelane')) else 2)
        if c.kind in VMK and sd & cu: n = max(n, 5)
        if c.op.startswith(('v_readfirstlane', 'v_readlane')) and vd & cu: n = max(n, 1)
        if (c.op.startswith('v_permlane') or 'row_' in c.text or 'quad_perm' in c.text or 'wave_' in c.text) and vd & cu: n = max(n, 2)
        if ('sdwa' in p.op or 'op_sel' in p.text) and c.kind in ('valu', 'trans') and vd & (cu | cd): n = max(n, 1)
        if c.kind == 'branch' and pd & cu: n = max(n, 1)
    elif p.kind == 'mfma':
        if c.kind == 'mfma':
            if pd & set(c.srcab): n = max(n, 8)
            if pd & set(c.srcc) and tuple(p.defs) != tuple(c.srcc): n = max(n, 6)
            if pd & cd and tuple(p.defs) != tuple(c.srcc): n = max(n, 6)
        elif c.kind in ('valu', 'trans') + VMK + LGK:
            if pd & (cu | cd): n = max(n, 8)
            if c.kind in ('valu', 'trans') and set(p.srcc) & cd: n = max(n, 3)
    elif p.kind == 'salu':
        if ('x', 'm0') in pd and c.kind == 'dma': n = max(n, 1)
    elif p.kind == 'vst':
        if p.wide_data and set(p.wide_data) & cd: n = max(n, 2)
    return n

def hazards(seq, verbose=False):
    out = []; added = 0
    for c in seq:
        if c.kind in ('label', 'dir', 'nop', 'wait'): out.append(c); continue
        dist = 0; pad = 0
        for p in reversed(out):
            if dist >= 8: break
            nd = need_dist(p, c)
            if nd > dist and nd - dist > pad:
                pad = nd - dist
                if verbose: print('hazard pad', pad, ':', p.text, '->', c.text)
            dist += states(p)
        if pad:
            out.append(I('s_nop %d' % (pad - 1))); added += pad
        out.append(c)
    return out, added

def estimate(seq):
    t = 0; mf = -99; lastv = -99; n = 0
    for i in seq:
        k = i.kind
        if k in ('label', 'dir'): continue
        if k == 'mfma':
            t = max(t, mf + 16); mf = t; t += 4; n += 1; lastv = -99
        elif k in SCAL or k == 'branch':
            t += 4 * states(i)
        else:
            t = max(t, mf + 8)
            if k in LGK or k in VMK:
                t = max(t, lastv + 12)
                t += 4
            elif k == 'trans': lastv = t + 4; t += 8
            else: lastv = t; t += 4
    return t, n

class Delay:
    def __init__(self, n): self.n = n
class NotBefore:
    def __init__(self, g): self.g = g

class Sched:
    def __init__(self):
        self.m = []; self.sc = []; self.vec = []; self.res = []
    def mfma(self, text):
        self.m.append(I(text)); self.sc.append([]); self.vec.append([]); self.res.append(0)
        return len(self.m) - 1
    def n(self): return len(self.m)
    def cap(self, g):
        ns = max(self.nscal(g), 1)
        used = sum(2 if x.kind == 'trans' else 1 for x in self.vec[g])
        return 3 - ns - used
    def nscal(self, g):
        l = [x for x in self.sc[g] if x.kind != 'label']
        return len(l) + (0 if any(x.kind == 'wait' for x in l) else self.res[g])
    def pin(self, g, *ins):
        for i in ins:
            if isinstance(i, str): i = I(i)
            if i.kind == 'wait': self.sc[g].insert(0, i)
            elif i.kind in SCAL or i.kind in ('branch', 'label'): self.sc[g].append(i)
            else: self.vec[g].append(i)
    def reserve(self, g): self.res[g] = 1
    def dist_ok(self, g, it, at_sc=False):
        seq = []
        for gg in range(max(0, g - 4), g + 1):
            seq.append(self.m[gg]); seq += self.sc[gg]
            if gg < g or not at_sc: seq += self.vec[gg]
        d = 0
        for p in reversed(seq):
            if p.kind == 'wait': continue
            if need_dist(p, it) > d: return False
            d += 1
            if d >= 8: break
        return True
    def flow(self, items, g0, g1=None, overflow=0, window=1, where=None):
        g1 = self.n() if g1 is None else g1
        items = [I(x) if isinstance(x, str) else x for x in items]
        g = g0; last = g0; mine = []
        MEM = LGK + VMK
        def dep(a, b):
            if a.kind in MEM and b.kind in MEM: return True
            if a.kind in ('barrier', 'wait', 'branch', 'label') or b.kind in ('barrier', 'wait', 'branch', 'label'): return True
            ad, bd = set(a.defs), set(b.defs)
            return bool(ad & (bd | set(b.uses)) or bd & set(a.uses))
        while items and g < g1:
            it = items[0]
            if isinstance(it, Delay):
                if last + it.n > g: g = last + it.n; mine = []
                items.pop(0); continue
            if isinstance(it, NotBefore):
                if it.g > g: g = it.g; mine = []
                items.pop(0); continue
            placed = None
            cands = []
            for k in range(min(window, len(items))):
                it = items[k]
                if isinstance(it, (Delay, NotBefore)): break
                if any(dep(items[e], it) for e in range(k)): continue
                cands.append(k)
            if self.cap(g) + overflow >= 2: cands.sort(key=lambda k: (items[k].kind not in MEM + SCAL, items[k].kind != 'trans', k))
            for k in cands:
                it = items[k]
                if it.kind in SCAL or it.kind in ('branch', 'label'):
                    if any(dep(x, it) for x in mine): continue
                    if it.kind == 'label' or self.nscal(g) == 0 or (self.cap(g) + overflow >= 1 and self.nscal(g) < 2 + overflow):
                        self.sc[g].append(it); placed = k; break
                else:
                    c = 2 if it.kind == 'trans' else 1
                    if self.cap(g) + overflow < c: continue
                    if it.kind in MEM:
                        if any(dep(x, it) for x in mine if x.kind not in MEM): continue
                        if not self.dist_ok(g, it, True): continue
                        p = len([x for x in self.vec[g] if x.kind in MEM])
                        self.vec[g].insert(p, it)
                    else:
                        if not self.dist_ok(g, it): continue
                        self.vec[g].append(it)
                    mine.append(it); placed = k; break
            if placed is not None:
                if where is not None: where[id(items[placed])] = g
                last = g; items.pop(placed)
            else: g += 1; mine = []
        return last, items
    def linear(self):
        out = []
        for g in range(self.n()):
            out.append(self.m[g]); out += self.sc[g]; out += self.vec[g]
        return out

def L(text):
    return [I(x.strip()) for x in text.strip().split('\n') if x.split(';')[0].strip()]
def plain(items): return [I(x) if isinstance(x, str) else x for x in items if not isinstance(x, (Delay, NotBefore))]
def render(seq):
    return ''.join((i.text if i.kind in ('label', 'dir') else '    ' + i.text) + '\n' for i in seq)
```

```python
from asm import *
from cfg import *

AR = 8
ONES = 24; CSA = 28; CSV = 36; NEGM = 44; RS = 48; VEPS = 52; TMP = 56
ACCA = 64; ACCB = 128; XV = 192
vTR = (1, 2); vTH = (3, 4); vDW = 5; vST = 6; vCS = 7
vXR = (36, 37, 38, 39); vXD = (40, 41); vDW2 = 60; vDWH = 61; vL16 = 62; vCSH = 63
STA = ACCB + 48
MB = 9 * 16384
sTAB = 24; sTABH = 34; sT = 39; sLW = 41; sBQ = 42; sBF = 43; sBH = 44; sBX = 45
sW = 46; sTt = 47; sN = 48; sR = 49; sC = 50; sE = 51; sQ0 = 52; sH0 = 56; sK = 58; sQS = 59
SRDX = 's[4:7]'; SRDQ = 's[8:11]'; SRDF = 's[12:15]'; SRDW = 's[16:19]'; SRDQS = 's[20:23]'

def xreg(ks, q):
    if ks < 16: b = (ks * 4 + q) * 4; return 'a[%d:%d]' % (b, b + 3)
    b = XV + ((ks - 16) * 4 + q) * 4; return 'v[%d:%d]' % (b, b + 3)
def v4(b): return 'v[%d:%d]' % (b, b + 3)
def MF(d, a, b, c): return 'v_mfma_f32_16x16x32_bf16 %s, %s, %s, %s' % (d, a, b, c)

def dma_item(kind, s, slot, tag):
    o = ['s_add_u32 m0, s%d, %d' % (sLW, slot * 16384)]
    if kind == 'x':
        o.append('s_add_u32 s%d, s%d, s%d' % (sT, sTAB + s, sBX)); srd = SRDX; steps = [8*1280 - 1024] * 3; vo = [vXD[0], vXD[1]] * 2
    elif kind == 'q':
        o += ['s_mul_i32 s%d, s%d, 1920' % (sT, sTAB + s), 's_add_u32 s%d, s%d, s%d' % (sT, sT, sBQ)]
        srd = SRDQ; steps = [4*3840 - 1024, 12*3840 - 1024, 4*3840 - 1024]; vo = [vDW] * 4
    elif kind == 'f':
        o += ['s_mul_i32 s%d, s%d, 1536' % (sT, sTAB + s), 's_add_u32 s%d, s%d, s%d' % (sT, sT, sBF)]
        srd = SRDF; steps = [4*3072 - 1024, 12*3072 - 1024, 4*3072 - 1024]; vo = [vDW2] * 4
    elif kind == 'h':
        o.append('s_add_u32 s%d, s%d, s%d' % (sT, sTABH + s, sBH)); srd = SRDF; steps = [16*3072 - 1024] * 3; vo = [vDWH] * 4
    o = [I(x) for x in o]
    for i in range(4):
        o.append(I('buffer_load_dwordx4 v%d, %s, s%d offen offset:%d lds' % (vo[i], srd, sT, 1024 * i), tag=tag))
        if i < 3: o.append(I('s_add_u32 s%d, s%d, %d' % (sT, sT, steps[i])))
    return o

def prologue(opt):
    p = L(f"""
    s_cmp_ge_u32 s2, 256
    s_cbranch_scc1 K1_end
    s_load_dwordx2 s[4:5], s[0:1], 0
    s_load_dwordx2 s[8:9], s[0:1], 8
    s_load_dwordx4 s[60:63], s[0:1], 32
    s_load_dwordx2 s[16:17], s[0:1], 72
    s_load_dwordx2 s[64:65], s[0:1], 16
    s_load_dwordx2 s[66:67], s[0:1], 48
    s_getpc_b64 s[68:69]
    v_lshlrev_b32 v1, 7, v0
    v_lshrrev_b32 v2, 6, v0
    global_load_dword v{TMP}, v1, s[68:69]
    v_readfirstlane_b32 s{sW}, v2
    v_and_b32 v0, 63, v0
    s_and_b32 s70, s2, 7
    s_lshr_b32 s71, s2, 3
    s_and_b32 s72, s70, 1
    s_lshl_b32 s72, s72, 3
    s_and_b32 s73, s71, 7
    s_add_u32 s{sR}, s72, s73
    s_lshr_b32 s70, s70, 1
    s_lshl_b32 s70, s70, 2
    s_lshr_b32 s71, s71, 3
    s_add_u32 s{sC}, s70, s71
    s_mul_i32 s71, s71, 5
    s_add_u32 s71, s71, 1
    s_lshr_b32 s71, s71, 1
    s_add_u32 s71, s71, s73
    s_lshl_b32 s71, s71, 7
    """)
    rot = opt.get('rot', 10)
    if rot == 0: p += L("s_mov_b32 s71, 0")
    elif rot != 10:
        p += L(f"""
        s_add_u32 s71, s{sR}, s{sC}
        s_and_b32 s71, s71, {rot-1}
        s_mul_i32 s71, s71, {20//rot}
        s_lshr_b32 s71, s71, 1
        s_lshl_b32 s71, s71, 7
        """)
    for s in range(10):
        if s: p += L(f"s_add_u32 s71, s{sTAB+s-1}, 128")
        p += L(f"""
        s_sub_u32 s70, s71, 1280
        s_cselect_b32 s{sTAB+s}, s71, s70
        """)
    p += L(f"""
    v_lshrrev_b32 v1, 3, v0
    v_and_b32 v2, 7, v0
    v_lshrrev_b32 v3, 1, v1
    v_xor_b32 v4, v2, v3
    v_lshlrev_b32 v4, 4, v4
    v_mul_u32_u24 v5, 1280, v1
    v_add_u32 v{vXD[0]}, v5, v4
    v_xor_b32 v{vXD[1]}, 64, v{vXD[0]}
    v_lshlrev_b32 v3, 1, v3
    v_xor_b32 v4, v2, v3
    v_lshlrev_b32 v4, 4, v4
    v_and_b32 v6, 4, v1
    v_add_u32 v6, v6, v1
    v_mul_u32_u24 v5, 3840, v6
    v_add_u32 v{vDW}, v5, v4
    v_mul_u32_u24 v7, 3072, v6
    v_add_u32 v{vDW2}, v7, v4
    s_lshr_b32 s{sTt}, s{sW}, 1
    s_and_b32 s{sN}, s{sW}, 1
    s_lshl_b32 s{sLW}, s{sW}, 12
    s_lshl_b32 s70, s{sR}, 2
    s_add_u32 s70, s70, s{sW}
    s_mul_i32 s{sBX}, s70, {32*1280}
    s_lshl_b32 s70, s{sC}, 1
    s_add_u32 s70, s70, s{sTt}
    s_lshl_b32 s70, s70, 7
    s_mul_i32 s71, s{sN}, {32*3840}
    s_add_u32 s{sBQ}, s70, s71
    s_mov_b32 s6, 2621440
    s_mov_b32 s7, 0x20000
    s_mov_b32 s10, 2457600
    s_mov_b32 s11, 0x20000
    s_waitcnt lgkmcnt(0)
    """)
    return p

def setup2(opt):
    p = L(f"""
    s_cmp_eq_u32 s{sTt}, 0
    s_cselect_b32 s12, s60, s62
    s_cselect_b32 s13, s61, s63
    s_mov_b32 s14, 1966080
    s_mov_b32 s15, 0x20000
    s_mov_b32 s18, {WS_SIZE}
    s_mov_b32 s19, 0x20000
    s_mov_b32 s20, s16
    s_mov_b32 s21, s17
    s_cmp_eq_u32 s{sC}, 15
    s_cselect_b32 s22, 0, s18
    s_mov_b32 s23, 0x20000
    s_lshl_b32 s70, s{sC}, 7
    s_mul_i32 s71, s{sN}, {32*3072}
    s_add_u32 s{sBF}, s70, s71
    s_lshl_b32 s70, s{sC}, 6
    s_add_u32 s{sBH}, s70, 2048
    s_cmp_eq_u32 s{sN}, 0
    """)
    for s in range(5): p += L(f"s_cselect_b32 s{sTABH+s}, s{sTAB+2*s}, s{sTAB+2*s+1}")
    for s in range(5): p += L(f"s_mul_i32 s{sTABH+s}, s{sTABH+s}, 1536")
    p += L(f"""
    s_cmp_lt_u32 s{sC}, 5
    s_cselect_b32 s{sQS}, {fh(20**-0.5*LOG2E)}, 1.0
    s_mov_b32 s{sK}, {fh(-(20**0.5))}
    s_cselect_b32 s{sK}, s{sK}, {fh(-LOG2E)}
    s_cmp_eq_u32 s{sTt}, 1
    s_cselect_b64 vcc, -1, 0
    """)
    p += L(f"""
    s_lshl_b32 s70, s{sR}, 2
    s_add_u32 s70, s70, s{sW}
    s_mul_i32 s71, s70, 122880
    s_xor_b32 s70, s70, 1
    s_mul_i32 s72, s70, 122880
    s_lshl_b32 s70, s{sC}, 2
    s_add_u32 s70, s70, s{sN}
    s_lshl_b32 s70, s70, 1
    s_add_u32 s70, s70, s{sTt}
    s_lshl_b32 s70, s70, 10
    s_add_u32 s{sQ0}, s71, s70
    s_add_u32 s{sQ0+2}, s72, s70
    s_xor_b32 s70, s70, 1024
    s_add_u32 s{sQ0+1}, s71, s70
    s_add_u32 s{sQ0+3}, s72, s70
    s_lshl_b32 s70, s{sR}, 1
    s_add_u32 s70, s70, s{sTt}
    s_mul_i32 s70, s70, {68*4096}
    s_add_u32 s70, s70, {WS_HO}
    s_lshl_b32 s71, s{sN}, 11
    s_add_u32 s70, s70, s71
    s_lshl_b32 s71, s{sC}, 1
    s_add_u32 s71, s71, s{sN}
    s_lshl_b32 s71, s71, 12
    s_lshl_b32 s72, s{sTt}, 9
    s_add_u32 s71, s71, s72
    s_add_u32 s{sH0}, s70, s71
    s_add_u32 s71, s{sC}, 32
    s_lshl_b32 s71, s71, 12
    s_lshl_b32 s72, s{sN}, 9
    s_add_u32 s71, s71, s72
    s_add_u32 s{sH0+1}, s70, s71
    """)
    p += L(f"""
    v_lshrrev_b32 v8, 5, v0
    v_bfe_u32 v9, v0, 2, 3
    v_and_b32 v10, 3, v0
    v_lshrrev_b32 v11, 1, v9
    s_lshl_b32 s70, s{sN}, 1
    s_add_u32 s70, s70, s{sTt}
    v_xor_b32 v11, s70, v11
    v_lshlrev_b32 v11, 5, v11
    v_lshl_add_u32 v11, v10, 3, v11
    v_lshl_add_u32 v11, v9, 7, v11
    v_lshl_add_u32 v{vTR[0]}, v8, 11, v11
    v_xor_b32 v{vTR[1]}, 32, v{vTR[0]}
    v_lshrrev_b32 v11, 2, v9
    v_xor_b32 v11, s{sN}, v11
    v_lshlrev_b32 v11, 5, v11
    v_lshl_add_u32 v11, v10, 3, v11
    v_lshl_add_u32 v11, v9, 6, v11
    v_lshl_add_u32 v11, v8, 10, v11
    s_lshl_b32 s71, s{sTt}, 13
    v_add_u32 v{vTH[0]}, s71, v11
    v_xor_b32 v{vTH[1]}, 0x2000, v{vTH[0]}
    v_bfe_u32 v11, v0, 4, 1
    v_lshlrev_b32 v12, 1, v11
    v_xor_b32 v12, v12, v10
    v_lshlrev_b32 v12, 4, v12
    v_and_b32 v13, 3, v9
    v_lshl_add_u32 v13, v8, 2, v13
    v_lshl_add_u32 v13, v11, 3, v13
    v_mul_u32_u24 v13, 3072, v13
    v_add_u32 v{vDWH}, v13, v12
    v_and_b32 v9, 15, v0
    v_lshrrev_b32 v10, 4, v0
    v_lshrrev_b32 v11, 1, v9
    v_xor_b32 v11, v11, v10
    v_lshlrev_b32 v11, 4, v11
    v_lshl_add_u32 v11, v9, 7, v11
    v_add_u32 v{vXR[0]}, s{sLW}, v11
    v_xor_b32 v{vXR[1]}, 0x1000, v{vXR[0]}
    v_xor_b32 v{vXR[2]}, 64, v{vXR[0]}
    v_xor_b32 v{vXR[3]}, 64, v{vXR[1]}
    v_lshlrev_b32 v{vL16}, 4, v0
    v_and_b32 v11, 31, v0
    v_lshlrev_b32 v11, 4, v11
    v_lshl_add_u32 v{vST}, v8, 10, v11
    s_lshl_b32 s70, s70, 6
    s_add_u32 s70, s70, {MB + 10240}
    v_lshlrev_b32 v10, 4, v10
    v_add_u32 v{vCS}, s70, v10
    v_xor_b32 v{vCSH}, 64, v{vCS}
    v_mov_b32 v{ONES}, 0x3f803f80
    v_mov_b32 v{ONES+1}, 0x3f803f80
    v_mov_b32 v{ONES+2}, 0x3f803f80
    v_mov_b32 v{ONES+3}, 0x3f803f80
    """)
    return p

def stats_write():
    t = TMP
    a = [f's_lshl_b32 s{sE}, s{sW}, 11', f's_add_u32 s{sE}, s{sE}, {MB}', f'v_add_u32 v{t}, s{sE}, v{vL16}',
         f's_lshl_b32 s{sE}, s{sW}, 9', f's_add_u32 s{sE}, s{sE}, {MB+8192}', f'v_lshl_add_u32 v{t+1}, v0, 2, s{sE}']
    w = [I(f'ds_write_b128 v{t}, {v4(STA+8)}', tag='st'), I(f'ds_write_b128 v{t}, {v4(STA+12)} offset:1024', tag='st'),
         I(f'ds_write_b32 v{t+1}, v{STA}', tag='st'), I(f'ds_write_b32 v{t+1}, v{STA+4} offset:256', tag='st')]
    return a, w
def stats_read():
    t = TMP
    o = [f'v_and_b32 v{t+2}, 15, v0', f'v_lshrrev_b32 v{t+3}, 2, v{t+2}', f'v_lshl_add_u32 v{t+3}, v{t+3}, 4, v{t+2}',
         f'v_and_b32 v{t+2}, 3, v0', f'v_lshlrev_b32 v{t+2}, 2, v{t+2}', f'v_lshl_add_u32 v{t+2}, v{t+3}, 4, v{t+2}',
         f's_lshl_b32 s{sE}, s{sW}, 11', f's_add_u32 s{sE}, s{sE}, {MB}',
         f'v_add_u32 v{t+2}, s{sE}, v{t+2}', f'v_xor_b32 v{t+3}, 0x800, v{t+2}', f'v_xor_b32 v42, 0x200, v{t+1}']
    r = [f'ds_read_b32 v{VEPS}, v{t+2}', f'ds_read_b32 v{VEPS+1}, v{t+2} offset:1024',
         f'ds_read_b32 v{VEPS+2}, v{t+3}', f'ds_read_b32 v{VEPS+3}, v{t+3} offset:1024',
         f'ds_read_b32 v{NEGM}, v{t+1}', f'ds_read_b32 v{NEGM+1}, v{t+1} offset:256',
         f'ds_read_b32 v{NEGM+2}, v42', f'ds_read_b32 v{NEGM+3}, v42 offset:256']
    c = []
    for q in range(4): c.append(f'v_mul_f32 v{NEGM+q}, {fh(-1/640)}, v{NEGM+q}')
    for q in range(4): c.append(f'v_mul_f32 v{VEPS+q}, {fh(1/640)}, v{VEPS+q}')
    for q in range(4): c.append(f'v_fma_f32 v{VEPS+q}, -v{NEGM+q}, v{NEGM+q}, v{VEPS+q}')
    for q in range(4): c.append(f'v_max_f32 v{VEPS+q}, 0, v{VEPS+q}')
    for q in range(4): c.append(f'v_add_f32 v{VEPS+q}, {fh(1e-5)}, v{VEPS+q}')
    for q in range(4): c.append(f'v_rsq_f32 v{RS+q}, v{VEPS+q}')
    for q in range(4): c.append(f'v_mul_f32 v{RS+q}, s{sQS}, v{RS+q}')
    return o, r, c

def cs_write(p, half):
    o = [I(f'ds_write_b128 v{vCS}, {v4(CSA)} offset:{p*512}', tag='cs%d' % p)]
    if not half: o.append(I(f'ds_write_b128 v{vCS}, {v4(CSA+4)} offset:{p*512+256}', tag='cs%d' % p))
    return o

def epi_qkv(acc, p, dl, sc=''):
    o = []
    for jj in range(2):
        o += [f'ds_read_b128 {v4(CSV)}, v{(vCS, vCSH)[jj]} offset:{p*512}', f'ds_read_b128 {v4(CSV+4)}, v{(vCS, vCSH)[jj]} offset:{p*512+256}', Delay(dl)]
        for ch in range(2):
            ts = jj * 2 + ch
            for pr in range(2):
                d = acc + (ts * 4 + 2 * pr) * 4
                for q in (2 * pr, 2 * pr + 1):
                    a = acc + (ts * 4 + q) * 4
                    o += [f'v_fmac_f32 v{a+i}, v{NEGM+q}, v{CSV+4*ch+i}' for i in range(4)]
                    o += [f'v_mul_f32 v{a+i}, v{RS+q}, v{a+i}' for i in range(4)]
                    o += [f'v_cvt_pk_bf16_f32 v{d+2*(q&1)+i}, v{a+2*i}, v{a+2*i+1}' for i in range(2)]
                if ch: o.append(f's_add_u32 s{sQ0+2*pr+jj}, s{sQ0+2*pr+jj}, 4096')
                o.append(I(f'buffer_store_dwordx4 {v4(d)}, v{vL16}, {SRDQS}, s{sQ0+2*pr+jj} offen{sc}', tag='stq'))
    o += [f'v_mul_f32 v{RS+q}, s{sK}, v{RS+q}' for q in range(4)]
    return o

def epi_gu(acc, p, half, dl, sc=''):
    o = []
    T = TMP
    for jj in range(1 if half else 2):
        if half: o += [f'ds_read_b128 {v4(CSV)}, v{vCS} offset:{p*512}', f'ds_read_b128 {v4(CSV+4)}, v{vCSH} offset:{p*512}', Delay(dl)]
        else: o += [f'ds_read_b128 {v4(CSV)}, v{(vCS, vCSH)[jj]} offset:{p*512}', f'ds_read_b128 {v4(CSV+4)}, v{(vCS, vCSH)[jj]} offset:{p*512+256}', Delay(dl)]
        for pr in range(2):
            d = acc + (jj * 8 + 2 * pr) * 4
            for q in (2 * pr, 2 * pr + 1):
                g = acc + (jj * 8 + q) * 4; u = g + 16
                o += [f'v_fmac_f32 v{g+i}, v{NEGM+q}, v{CSV+i}' for i in range(4)]
                o += [f'v_fmac_f32 v{u+i}, v{NEGM+q}, v{CSV+4+i}' for i in range(4)]
                if half:
                    o += [f'v_cndmask_b32 v{T+i}, v{g+i}, v{u+i}, vcc' for i in range(4)]
                    o += [f'v_mul_f32 v{T+i}, v{RS+q}, v{T+i}' for i in range(4)]
                else: o += [f'v_mul_f32 v{T+i}, v{RS+q}, v{g+i}' for i in range(4)]
                o += [f'v_exp_f32 v{T+i}, v{T+i}' for i in range(4)]
                o += [f'v_mul_f32 v{g+i}, v{g+i}, v{u+i}' for i in range(4)]
                o += [f'v_fma_f32 v{T+i}, v{T+i}, v{VEPS+q}, v{VEPS+q}' for i in range(4)]
                o += [f'v_rcp_f32 v{T+i}, v{T+i}' for i in range(4)]
                o += [f'v_mul_f32 v{g+i}, v{g+i}, v{T+i}' for i in range(4)]
                o += [f'v_cvt_pk_bf16_f32 v{d+2*(q&1)+i}, v{g+2*i}, v{g+2*i+1}' for i in range(2)]
            x = (2048 if pr else 0) ^ (512 if jj else 0)
            o.append(f's_xor_b32 s{sE}, s{sH0 + (1 if half else 0)}, {x}')
            o += [Delay(1), f'v_permlane32_swap_b32 v{d}, v{d+2}', f'v_permlane32_swap_b32 v{d+1}, v{d+3}']
            o.append(I(f'buffer_store_dwordx4 {v4(d)}, v{vST}, {SRDW}, s{sE} offen{sc}', tag='sth%d' % p))
    return o

def w2_scalars(rnd):
    return L(f"""
    s_lshl_b32 s70, s{sR}, 2
    s_add_u32 s70, s70, s{sW}
    s_add_u32 s70, s70, {64*rnd}
    s_min_u32 s70, s70, 679
    s_mul_i32 s71, s70, 6554
    s_lshr_b32 s71, s71, 16
    s_mul_i32 s72, s71, 10
    s_sub_u32 s72, s70, s72
    s_lshl_b32 s72, s72, 7
    s_mul_i32 s73, s71, {32*1280}
    s_sub_u32 s75, s71, 48
    s_mul_i32 s76, s75, {40*1280}
    s_cmp_lt_u32 s71, 48
    s_cselect_b32 s8, s66, s64
    s_cselect_b32 s9, s67, s65
    s_mov_b32 s10, 1966080
    s_cselect_b32 s10, s10, 819200
    s_cselect_b32 s73, s73, s76
    s_movk_i32 s78, {8*1280-1024}
    s_cselect_b32 s77, s78, {20*1280-1024}
    s_cselect_b32 s78, s78, {(-12*1280-1024) & 0xffffffff}
    s_sub_u32 s75, s71, 64
    s_mul_i32 s76, s75, {160*1280}
    s_add_u32 s76, s76, {16*1280}
    s_cmp_lt_u32 s71, 64
    s_cselect_b32 s73, s73, s76
    s_cselect_b32 s78, s78, {60*1280-1024}
    s_cselect_b32 s79, 0, {36*1280}
    v_mad_u32_u24 v{vDW}, v{ACCA}, s79, v{ACCA+1}
    s_add_u32 s{sT}, s73, s72
    """)

CYC = False
def stamp(i):
    x = I(f'{"s_memtime" if CYC else "s_memrealtime"} s[{80+2*i}:{81+2*i}]'); x.kind = 'salu'; return x
def stamps_out(n, lbl, base=0):
    o = L(f"""
    s_waitcnt vmcnt(0) lgkmcnt(0)
    s_cmp_eq_u32 s{sW}, 0
    s_cbranch_scc0 {lbl}
    s_lshl_b32 s76, s2, 8
    s_add_u32 s76, s76, {STAMP_OFF + base*8}
    v_mov_b32 v1, 0
    s_mov_b64 exec, 1
    """)
    for i in range(n):
        o += L(f"v_mov_b32 v2, s{80+2*i}\nv_mov_b32 v3, s{81+2*i}\nbuffer_store_dwordx2 v[2:3], v1, {SRDW}, s76 offen offset:{8*i}")
    o += L(f"{lbl}:")
    return o

class Rebase:
    def __init__(self): self.base = {}
    def off(self, S, reg, addr, g, slotbase):
        b = self.base.get(reg, 0)
        if not (0 <= addr - b <= 65535):
            ins = I(f'v_add_u32 v{reg}, {(slotbase - b) & 0xffffffff}, v{reg}')
            ins.note = 'pre'
            S(g, ins); self.base[reg] = b = slotbase
        return addr - b

def build(opt):
    global CYC
    CYC = opt.get('cyc', False)
    st = opt.get('stamps', False)
    S = Sched()
    passes = [('q', 10, ACCA), ('f', 10, ACCB), ('h', 5, ACCA)]
    stages = [(pi, k, s, acc) for pi, (k, ns, acc) in enumerate(passes) for s in range(ns)]
    NS = len(stages)
    frags = []
    first_frag = []; last_cs = {}; last_stat = None; pass_first = {}
    for gs, (pi, k, s, acc) in enumerate(stages):
        first_frag.append(len(frags))
        if s == 0: pass_first[pi] = S.n()
        if k != 'h':
            fl = [(2*s + kk, jj*2 + ch, vTR[jj], ch*8192 + kk*4096, 1024, ch if jj == 0 else None) for kk in range(2) for jj in range(2) for ch in range(2)]
        else:
            fl = [(4*s + u, ab, vTH[ab], u*2048, 512, 0 if ab == 0 else None) for u in range(4) for ab in range(2)]
            if gs == NS - 1: fl = fl[0::2] + fl[1::2]
        for fi, (ks, ts, areg, off, hs, cs) in enumerate(fl):
            ar = v4(AR + 4 * (len(frags) % 4))
            frags.append(dict(stage=gs, first=S.n(), reg=areg, off=off, hs=hs, ar=AR + 4 * (len(frags) % 4)))
            for q in range(4):
                d = v4(acc + (ts*4 + q) * 4)
                S.mfma(MF(d, ar, xreg(ks, q), '0' if ks == 0 else d))
            if cs is not None:
                d = v4(CSA + 4*cs)
                last_cs[pi] = S.mfma(MF(d, ar, v4(ONES), '0' if ks == 0 else d))
            if pi == 0 and fi < 4:
                ks2 = 2*s + (fi >> 1); q = fi & 1
                d = v4(STA + 4*q); S.mfma(MF(d, v4(ONES), xreg(ks2, q), '0' if ks2 == 0 else d))
                d = v4(STA + 8 + 4*q); last_stat = S.mfma(MF(d, xreg(ks2, q), xreg(ks2, q), '0' if ks2 == 0 else d))
    NG = S.n(); JOIN = pass_first[1]
    bar_gap = [-1] + [frags[first_frag[gs] - 3]['first'] for gs in range(1, NS)]
    fx = [0, 1, 2, 3]; fw = [4, 5, 6, 7, 8]; xs = {}; wsl = {}; nx = 0; nw = 0
    issue = {}
    init = []
    NI = opt.get('ni', 3); MAXI = opt.get('maxi', 3); LA = opt.get('la', 5)
    while len(init) < NI:
        if nx <= nw: xs[nx] = fx.pop(0); init.append(('x', nx)); nx += 1
        else: wsl[nw] = fw.pop(0); init.append(('w', nw)); nw += 1
    for gs in range(0, NS):
        if 0 <= gs - 1 < 10: (fx if nx < 10 else fw).append(xs[gs - 1])
        if gs >= 2: fw.append(wsl[gs - 2])
        l = []
        while len(l) < (MAXI if gs < 7 else 2):
            if nx < 10 and fx and nx <= nw: xs[nx] = fx.pop(0); l.append(('x', nx)); nx += 1
            elif nw < NS and fw and nw <= gs + LA: wsl[nw] = fw.pop(0); l.append(('w', nw)); nw += 1
            else: break
        issue[gs] = l
    def item(kind, i):
        if kind == 'x': return dma_item('x', i, xs[i], 'x%d' % i)
        return dma_item(stages[i][1], stages[i][2], wsl[i], 'w%d' % i)
    def xreads(s):
        return [I(f'ds_read_b128 {xreg(2*s+kk, q)}, v{vXR[kk*2 + (q>>1)]} offset:{xs[s]*16384 + (q&1)*2048}') for kk in range(2) for q in range(4)]
    RB = Rebase(); pre = []
    def reads(F, g):
        f = frags[F]; sb = wsl[f['stage']] * 16384
        o = RB.off((lambda g, i: pre.append(i) if g < 0 else S.pin(g, i)), f['reg'], sb + f['off'], g - 1, sb)
        return [I(f"ds_read_b64_tr_b16 v[{f['ar']+2*h}:{f['ar']+2*h+1}], v{f['reg']} offset:{o + h*f['hs']}") for h in range(2)]
    first_reads = []
    for F in range(3): first_reads += reads(F, -1)
    p2pre = []; base_at_join = None
    for F in range(3, len(frags)):
        g = frags[F - 3]['first']
        r = reads(F, g)
        S.vec[g].insert(0, r[0]); S.vec[g+1].insert(0, r[1])
        if F >= first_frag[10] and g < JOIN: p2pre += r; base_at_join = dict(RB.base)
    for F in range(1, len(frags)): S.reserve(frags[F]['first'] - 1)
    sa, sw_ = stats_write(); ra, rr, rc = stats_read()
    for gs in range(1, NS):
        g = bar_gap[gs]
        tags = ['w%d' % gs, 'x%d' % gs, 'st', 'cs0', 'cs1']
        S.res[g-1] = 0; S.pin(g - 1, W(tags)); S.pin(g, 's_barrier')
    for gs in range(1, 10):
        xr = []
        for x in xreads(gs): xr += [x, Delay(opt.get('xdl', 2))]
        _, left = S.flow(xr, bar_gap[gs]); assert not plain(left)
    print('k1 issue:', init, issue)
    for gs in range(0, NS):
        its = issue[gs]
        if not its: continue
        g1 = bar_gap[gs+1] - 1 if gs + 1 < NS else NG
        fl = []
        g0 = bar_gap[gs] + 1
        if gs == 10: g0 = JOIN
        dl = max(1, min(6, (g1 - g0 - 3 * len(its)) // (4 * len(its))))
        for kind, i in its:
            for x in item(kind, i):
                fl.append(x)
                if x.kind == 'dma': fl.append(Delay(dl))
        _, left = S.flow(fl, g0, g1)
        assert not plain(left), (gs, left)
    _, left = S.flow(sa + ra, bar_gap[8]); assert not left
    lg, left = S.flow(sw_, last_stat + 5, JOIN); assert not left
    for pi in range(2):
        _, left = S.flow(cs_write(pi, False), last_cs[pi] + 5, pass_first[pi+1] + 2); assert not left
    sc = opt.get('sc', '')
    e0 = rr + [Delay(14)] + rc + epi_qkv(ACCA, 0, 14, sc)
    lg, left = S.flow(e0, bar_gap[11] + 1, pass_first[2]); assert not left, len(left)
    print('k1: qkv epilogue ends at gap', lg, 'of', pass_first[2])
    lg, left1 = S.flow(epi_gu(ACCB, 1, False, 14, sc), bar_gap[21] + 1)
    print('k1: gu epilogue leftover', len(left1))
    g = last_cs[2] + 5
    S.vec[g].insert(0, cs_write(2, True)[0])
    S.pin(g + 4, W(['cs2'])); S.pin(g + 5, 's_barrier')
    sg = opt.get('sg')
    if sg:
        for k, gs in enumerate(sg): S.pin(bar_gap[gs] + 2, stamp(k))
    if st:
        S.pin(JOIN - 1, stamp(2)); S.pin(pass_first[2] - 1, stamp(3))
    body = S.linear()
    ji = body.index(S.m[JOIN])
    tail = plain(left1) + plain(epi_gu(ACCA, 2, True, 0, sc))
    pro = ([stamp(0)] if st else []) + prologue(opt)
    main = L(f"s_cmp_eq_u32 s{sC}, 15\ns_cbranch_scc1 K1_alt")
    fine = opt.get('fine')
    if fine: main.append(stamp(6))
    for kind, i in init:
        main += item(kind, i)
        if fine and (kind, i) == ('w', 0): main.append(stamp(7))
    if fine: main.append(stamp(8))
    main += setup2(opt) + pre
    if fine: main.append(stamp(9))
    main += [W(['x0', 'w0'])]
    if fine: main.append(stamp(10))
    main += [I('s_barrier')]
    xr = xreads(0)
    main += xr[:4] + first_reads + xr[4:]
    if st: main.append(stamp(1))
    main += body[:ji] + L('K1_join:\ns_nop 0') + body[ji:]
    if st: main.append(stamp(4))
    main += tail
    main += L(f"""
    s_lshl_b32 s70, s2, 2
    s_add_u32 s70, s70, s{sW}
    s_lshl_b32 s70, s70, 2
    s_add_u32 s70, s70, {WS_FLAG}
    v_mov_b32 v1, 0
    buffer_store_dword v1, v1, {SRDW}, s70 offen
    """)
    if st: main += [I('s_waitcnt vmcnt(0)'), stamp(5)] + stamps_out(11 if fine else 6, 'K1_nost')
    if sg: main += stamps_out(len(sg), 'K1_nost')
    main += L('K1_end:\ns_endpgm')
    alt = L(f"""
    K1_alt:
    v_lshrrev_b32 v{ACCA}, 5, v0
    v_mul_u32_u24 v{ACCA+1}, 1280, v1
    v_add_u32 v{ACCA+1}, v{ACCA+1}, v4
    """)
    NR = 11
    def w2_issue(rnd):
        o = w2_scalars(rnd) + L(f's_add_u32 m0, s{sLW}, {(4 + rnd % 4) * 16384}')
        for i in range(4):
            o.append(I(f'buffer_load_dwordx4 v{vDW}, {SRDQ}, s{sT} offen offset:{1024*i} lds', tag='r%d' % rnd))
            if i < 3: o.append(I(f's_add_u32 s{sT}, s{sT}, s{(77, 78, 77)[i]}'))
        return o
    for i in range(4): alt += item('x', i) + w2_issue(i)
    alt += setup2(opt)
    alt += L(f"""
    s_lshl_b32 s70, s{sN}, 1
    s_add_u32 s70, s70, s{sTt}
    s_lshl_b32 s70, s70, 5
    v_xor_b32 v{ACCA+2}, s70, v{vTR[0]}
    s_add_u32 s70, s{sLW}, 65536
    v_add_u32 v{ACCA+2}, s70, v{ACCA+2}
    v_xor_b32 v{ACCA+3}, 32, v{ACCA+2}
    v_xor_b32 v{ACCA+4}, 64, v{ACCA+2}
    v_xor_b32 v{ACCA+5}, 96, v{ACCA+2}
    """) + plain(sa + ra)
    later = [(k, i) for gs in range(1, 10) for (k, i) in issue[gs] if k == 'w' and i >= 10]
    for rnd in range(NR):
        D = ACCA + 16 + 16 * (rnd % 2)
        alt += [W(['x%d' % rnd, 'r%d' % rnd])]
        if rnd < 10:
            alt += [I('s_barrier')] + xreads(rnd)
        for j in range(4):
            for h in range(2):
                alt.append(I(f'ds_read_b64_tr_b16 v[{D+4*j+2*h}:{D+4*j+2*h+1}], v{ACCA+2+j} offset:{(rnd % 4)*16384 + h*1024}'))
        if 1 <= rnd and rnd + 3 < 10: alt += item('x', rnd + 3)
        alt += L(f"""
        s_lshl_b32 s70, s{sR}, 2
        s_add_u32 s70, s70, s{sW}
        s_add_u32 s70, s70, {64*rnd}
        s_min_u32 s70, s70, 679
        s_lshl_b32 s70, s70, 12
        s_add_u32 s74, s70, {WS_W2}
        """)
        if rnd < 10:
            for kk in range(2):
                for q in range(2):
                    ks2 = 2*rnd + kk
                    d = v4(STA + 4*q); alt.append(I(MF(d, v4(ONES), xreg(ks2, q), '0' if ks2 == 0 else d)))
                    d = v4(STA + 8 + 4*q); alt.append(I(MF(d, xreg(ks2, q), xreg(ks2, q), '0' if ks2 == 0 else d)))
        for j in range(4):
            alt.append(I(f'buffer_store_dwordx4 {v4(D+4*j)}, v{vL16}, {SRDW}, s74 offen offset:{1024*j}{sc}'))
        alt.append(I('s_waitcnt lgkmcnt(0)'))
        if rnd + 4 < NR: alt += w2_issue(rnd + 4)
    alt += [I(x.text) for x in sw_] + L('s_waitcnt lgkmcnt(0)\ns_barrier')
    for k, i in later: alt += item(k, i)
    for reg in vTR:
        b = base_at_join.get(reg, 0)
        if b: alt += L(f'v_add_u32 v{reg}, {b}, v{reg}')
    alt += L('s_waitcnt vmcnt(0)\ns_barrier') + [I(x.text) for x in p2pre] + L('s_waitcnt lgkmcnt(0)')
    if st: alt += [stamp(1), stamp(2)]
    alt += L('s_branch K1_join')
    state = dict(vm=[], lg=[])
    pro = autowait(pro, state=state)
    st2 = dict(state)
    main = autowait(main, state=state); alt = autowait(alt, state=st2)
    m, a1 = hazards(pro + main, opt.get('verbose')); a, a2 = hazards(alt, opt.get('verbose'))
    print('k1: nops', a1, a2, 'est cycles/mfma', estimate(m), 'instrs', len(m), len(a))
    return m + a
```
